```python
import torch

def _softmax(x, axis=-1):
    return torch.softmax(x, dim=axis)
def _gelu(x):
    return torch.nn.functional.gelu(x, approximate="tanh")
def _silu(x):
    return torch.nn.functional.silu(x)
def _sigmoid(x):
    return torch.sigmoid(x)
def _layernorm(x, axis=-1, eps=1e-5):
    m = x.mean(dim=axis, keepdim=True)
    v = x.var(dim=axis, keepdim=True, unbiased=False)
    return (x - m) / torch.sqrt(v + eps)
def _scatter_add(tgt, idx, src, axis=0):
    return tgt.clone().index_add_(axis, idx, src)
def _segment_sum(src, seg, n):
    out = torch.zeros((n,) + src.shape[1:], dtype=src.dtype)
    return out.index_add_(0, seg, src)
def _pad(x, pw):
    flat = tuple(v for pair in reversed(pw) for v in pair)
    return torch.nn.functional.pad(x, flat)

kernel_name = 'concat_heads__mha_block_cached__mha_block_cached__near_ridge'

def setup_inputs():

    _w = (lambda a: (lambda t: t.to(torch.bfloat16) if t.is_floating_point() else t)(torch.as_tensor(a)))
    def _A_setup():
        B, Sq, D = 8, 240, 640
        H, Sk, Dh = 32, 1024, 128
        return {
            "x": _w((lambda *s: torch.randn(*s, dtype=torch.bfloat16) * 0.8)(B, Sq, D)),
            "k_cache": _w((lambda *s: torch.randn(*s, dtype=torch.bfloat16) * 0.8)(B, H, Sk, Dh)),
            "v_cache": _w((lambda *s: torch.randn(*s, dtype=torch.bfloat16) * 0.05)(B, H, Sk, Dh)),
            "wq": _w((lambda *s: torch.randn(*s, dtype=torch.bfloat16) * 0.8)(D, H * Dh) * (D ** -0.5)),
            "wo": _w((lambda *s: torch.randn(*s, dtype=torch.bfloat16) * 0.05)(H * Dh, D) * ((H * Dh) ** -0.5)),
        }
    _A_in = _A_setup()

    def _B_setup():
        B, Sq, D = 8, 240, 640
        H, Sk, Dh = 32, 1024, 128
        return {
            "x": _w((lambda *s: torch.randn(*s, dtype=torch.bfloat16) * 0.8)(B, Sq, D)),
            "k_cache": _w((lambda *s: torch.randn(*s, dtype=torch.bfloat16) * 0.8)(B, H, Sk, Dh)),
            "v_cache": _w((lambda *s: torch.randn(*s, dtype=torch.bfloat16) * 0.05)(B, H, Sk, Dh)),
            "wq": _w((lambda *s: torch.randn(*s, dtype=torch.bfloat16) * 0.8)(D, H * Dh) * (D ** -0.5)),
            "wo": _w((lambda *s: torch.randn(*s, dtype=torch.bfloat16) * 0.05)(H * Dh, D) * ((H * Dh) ** -0.5)),
        }
    _B_in = _B_setup()

    return {
        "A_x": _A_in["x"],
        "A_k_cache": _A_in["k_cache"],
        "A_v_cache": _A_in["v_cache"],
        "A_wq": _A_in["wq"],
        "A_wo": _A_in["wo"],
        "B_x": _B_in["x"],
        "B_k_cache": _B_in["k_cache"],
        "B_v_cache": _B_in["v_cache"],
        "B_wq": _B_in["wq"],
        "B_wo": _B_in["wo"],
    }

def reference(A_x, A_k_cache, A_v_cache, A_wq, A_wo, B_x, B_k_cache, B_v_cache, B_wq, B_wo):
    def _A_ref(x, k_cache, v_cache, wq, wo):
        B, Sq, D = x.shape
        H, Dh = 32, 128
        q = (lambda x, *d: x.permute(*d))((x @ wq).reshape(B, Sq, H, Dh), 0, 2, 1, 3)
        scores = torch.einsum("bhqd,bhkd->bhqk", q, k_cache) * (Dh ** -0.5)
        p = _softmax(scores, axis=-1)
        o = torch.einsum("bhqk,bhkd->bhqd", p, v_cache)
        return (lambda x, *d: x.permute(*d))(o, 0, 2, 1, 3).reshape(B, Sq, H * Dh) @ wo

    def _B_ref(x, k_cache, v_cache, wq, wo):
        B, Sq, D = x.shape
        H, Dh = 32, 128
        q = (lambda x, *d: x.permute(*d))((x @ wq).reshape(B, Sq, H, Dh), 0, 2, 1, 3)
        scores = torch.einsum("bhqd,bhkd->bhqk", q, k_cache) * (Dh ** -0.5)
        p = _softmax(scores, axis=-1)
        o = torch.einsum("bhqk,bhkd->bhqd", p, v_cache)
        return (lambda x, *d: x.permute(*d))(o, 0, 2, 1, 3).reshape(B, Sq, H * Dh) @ wo

    a = _A_ref(A_x, A_k_cache, A_v_cache, A_wq, A_wo)
    b = _B_ref(B_x, B_k_cache, B_v_cache, B_wq, B_wo)
    return torch.concatenate([a, b], axis=-1)
```

```python
import re

class R:
    __slots__ = ('k', 'i', 'n')
    def __init__(self, k, i, n=1):
        self.k, self.i, self.n = k, i, n
    def __str__(self):
        if self.n == 1:
            return f'{self.k}{self.i}'
        return f'{self.k}[{self.i}:{self.i + self.n - 1}]'
    def regs(self):
        return {(self.k, self.i + j) for j in range(self.n)}
    def __getitem__(self, j):
        if isinstance(j, slice):
            a = j.start or 0
            b = j.stop if j.stop is not None else self.n
            assert 0 <= a < b <= self.n, (a, b, self.n)
            return R(self.k, self.i + a, b - a)
        assert 0 <= j < self.n
        return R(self.k, self.i + j, 1)

def v(i, n=1): return R('v', i, n)
def s(i, n=1): return R('s', i, n)
def a(i, n=1): return R('a', i, n)
VCC = R('vcc', 0, 1); M0 = R('m0', 0, 1); EXEC = R('exec', 0, 1); SCC = R('scc', 0, 1)
R.__repr__ = R.__str__
_special = {'vcc': VCC, 'm0': M0, 'exec': EXEC}
def _opstr(o):
    if isinstance(o, R):
        if o.k in ('vcc', 'm0', 'exec'):
            return o.k
        return str(o)
    if isinstance(o, float):
        return repr(o)
    return str(o)

TRANS = ('v_exp_f32', 'v_log_f32', 'v_rcp_f32', 'v_rsq_f32', 'v_sqrt_f32', 'v_sin_f32', 'v_cos_f32')

class Ins:
    def __init__(self, op, ops=(), mods='', tag=None, comment=None):
        self.op, self.ops, self.mods, self.tag, self.comment = op, list(ops), mods, tag, comment
        self.defs, self.uses = set(), set()
        self.cls = self._classify()
        mo = re.search(r'offset:(\d+)', self.mods or '')
        if mo:
            lim = 4095 if self.op.startswith('buffer_') else 65535
            assert int(mo.group(1)) <= lim, (self.op, self.mods)
    def _classify(self):
        op, ops = self.op, self.ops
        def rg(o): return o.regs() if isinstance(o, R) else set()
        allr = set().union(*[rg(o) for o in ops]) if ops else set()
        if op.startswith('v_mfma'):
            self.defs = rg(ops[0]); self.uses = rg(ops[1]) | rg(ops[2]) | rg(ops[3])
            self.srcc = rg(ops[3]); self.srcab = rg(ops[1]) | rg(ops[2])
            self.passes = 8 if '32x32x16' in op else 4 if '16x16x32' in op else None
            assert self.passes
            return 'mfma'
        if op.startswith('v_'):
            if op.startswith('v_permlane'):
                self.defs = rg(ops[0]) | rg(ops[1]); self.uses = self.defs.copy()
            elif op.startswith('v_cmp'):
                self.defs = rg(ops[0]); self.uses = allr - self.defs if False else set().union(*[rg(o) for o in ops[1:]])
            else:
                self.defs = rg(ops[0]); self.uses = set().union(*[rg(o) for o in ops[1:]]) if len(ops) > 1 else set()
                if op.startswith(('v_fmac', 'v_pk_fmac', 'v_dot2c', 'v_accvgpr_write')) and not op.startswith('v_accvgpr'):
                    self.uses |= self.defs
                if op.startswith('v_cndmask') and len(ops) == 3:
                    self.uses |= VCC.regs()
            return 'valu'
        if op.startswith('ds_'):
            if op.startswith('ds_read'):
                self.defs = rg(ops[0]); self.uses = set().union(*[rg(o) for o in ops[1:]])
            else:
                self.uses = allr
            return 'ds'
        if op.startswith('buffer_'):
            lds = re.search(r'\blds\b', self.mods) is not None
            if op.startswith('buffer_load') and not lds:
                self.defs = rg(ops[0]); self.uses = set().union(*[rg(o) for o in ops[1:]])
                return 'vmem'
            self.uses = allr | (M0.regs() if lds else set())
            if lds: return 'dma'
            return 'vmem'
        if op == 's_waitcnt': return 'wait'
        if op == 's_nop': return 'nop'
        if op == 's_barrier': return 'barrier'
        if op == 'label': return 'label'
        if op.startswith(('s_branch', 's_cbranch')):
            self.uses = SCC.regs() | VCC.regs()
            return 'branch'
        if op.startswith('s_load'):
            self.defs = rg(ops[0]); self.uses = rg(ops[1])
            return 'smem'
        if op.startswith('s_'):
            if op.startswith('s_cmp'):
                self.defs = SCC.regs(); self.uses = allr
            elif op in ('s_endpgm', 's_setprio', 's_sleep'):
                pass
            else:
                self.defs = rg(ops[0]) | SCC.regs(); self.uses = set().union(*[rg(o) for o in ops[1:]]) if len(ops) > 1 else set()
                if op.startswith('s_cselect') or op.startswith('s_addc'): self.uses |= SCC.regs()
            return 'salu'
        return 'other'
    def text(self):
        if self.op == 'label': return f'{self.ops[0]}:'
        if self.op == 's_waitcnt': return f'    s_waitcnt {self.mods}'
        t = f'    {self.op} ' + ', '.join(_opstr(o) for o in self.ops)
        if self.mods: t += ' ' + self.mods
        if self.comment: t += f'    ; {self.comment}'
        return t
    def is_trans(self): return self.op in TRANS

def I(op, *ops, mods='', tag=None, c=None): return Ins(op, ops, mods, tag, c)
def label(name): return Ins('label', [name])
def waitcnt(vm=None, lgkm=None):
    m = []
    if vm is not None: m.append(f'vmcnt({vm})')
    if lgkm is not None: m.append(f'lgkmcnt({lgkm})')
    w = Ins('s_waitcnt', [], ' '.join(m)); w.vm, w.lgkm = vm, lgkm
    return w
def nop(n):
    return Ins('s_nop', [n - 1])
class WaitTag(Ins):
    def __init__(self, tag):
        Ins.__init__(self, 'waittag', []); self.wtag = tag; self.cls = 'waittag'

class State:
    def __init__(self):
        self.pos = 0
        self.wr = {}
        self.mfma_c = []
        self.store = []
        self.ldsq = []
        self.vmq = []

def run_pass(seq, st=None, strict=False):
    st = st or State()
    out, ins_at = [], {}
    for idx, I_ in enumerate(seq):
        lg = vm = None; nn = 0
        cls = I_.cls
        regs_touched = I_.uses | I_.defs
        if cls == 'waittag':
            last = -1
            for j, e in enumerate(st.vmq):
                if e['tag'] == I_.wtag: last = j
            if last >= 0:
                vm = len(st.vmq) - 1 - last
        elif cls not in ('wait', 'nop', 'label', 'barrier'):
            for j, e in enumerate(st.ldsq):
                if e['defs'] & regs_touched: lg = len(st.ldsq) - 1 - j if not e.get('smem') else 0
            if any(e.get('smem') for e in st.ldsq) and lg is not None: lg = 0
            for j, e in enumerate(st.vmq):
                if e['defs'] & regs_touched: vm = len(st.vmq) - 1 - j
        if lg is not None and lg > 15: lg = 15
        if vm is not None and vm > 63: vm = 63
        if lg is not None or vm is not None:
            w = waitcnt(vm, lg); out.append(w); st.pos += 1; _apply_wait(st, w)
        need = 0
        def req(reg_set, table):
            nonlocal need
            for r in reg_set:
                w = st.wr.get(r)
                if w is None: continue
                n = table(w)
                if n: need = max(need, n - (st.pos - w[1]))
        if cls == 'mfma':
            def t_ab(w):
                if w[0] == 'valu': return 2
                if w[0] == 'mfma': return 12 if w[2] == 8 else 8
                return 0
            req(I_.srcab, t_ab)
            def t_c(w):
                if w[0] == 'valu': return 2
                if w[0] == 'mfma':
                    return 0 if w[3] == frozenset(I_.srcc) and w[2] == I_.passes else (10 if w[2] == 8 else 6)
                return 0
            req(I_.srcc, t_c)
            def t_d(w):
                return 0
            w = st.wr.get(('exec', 0))
            if w and w[0] == 'valu': need = max(need, 4 - (st.pos - w[1]))
        elif cls in ('valu', 'ds', 'vmem', 'dma'):
            def t_m(w):
                if w[0] == 'mfma': return 12 if w[2] == 8 else 8
                return 0
            req(regs_touched, t_m)
            if cls == 'valu':
                def t_v(w):
                    if w[0] == 'valu' and w[2] == 'trans' and not I_.is_trans(): return 1
                    return 0
                req(I_.uses, t_v)
                if I_.op.startswith('v_permlane'):
                    req(I_.uses, lambda w: 2 if w[0] == 'valu' else 0)
                if I_.op.startswith(('v_readfirstlane', 'v_readlane')):
                    req(I_.uses, lambda w: 1 if w[0] == 'valu' else 0)
                req({r for r in I_.uses if r[0] in ('s', 'vcc')}, lambda w: 2 if w[0] == 'valu' else 0)
                for (rs, ep, ps) in st.mfma_c:
                    if rs & I_.defs: need = max(need, (7 if ps == 8 else 3) - (st.pos - ep))
                for (rs, ep) in st.store:
                    if rs & I_.defs: need = max(need, 2 - (st.pos - ep))
            else:
                req({r for r in I_.uses if r[0] == 's'}, lambda w: 5 if w[0] == 'valu' else 0)
                if cls == 'dma':
                    req(M0.regs(), lambda w: 1 if w[0] == 'salu' else 0)
                for (rs, ep) in st.store:
                    if rs & I_.defs: need = max(need, 1 - (st.pos - ep))
        elif cls == 'salu' or cls == 'branch':
            req({r for r in I_.uses if r[0] in ('s', 'vcc')}, lambda w: 1 if w[0] == 'valu' else 0)
        while need > 0:
            k = min(need, 16); out.append(nop(k)); st.pos += k; need -= k; nn += k
        if lg is not None or vm is not None or nn:
            ins_at[idx] = (lg, vm, nn)
        if cls == 'waittag':
            continue
        out.append(I_)
        if cls == 'nop': st.pos += I_.ops[0] + 1
        elif cls == 'label': pass
        else: st.pos += 1
        if cls == 'wait': _apply_wait(st, I_)
        if cls == 'mfma':
            for r in I_.defs: st.wr[r] = ('mfma', st.pos, I_.passes, frozenset(I_.defs))
            st.mfma_c.append((I_.srcc, st.pos, I_.passes)); st.mfma_c = st.mfma_c[-8:]
        elif cls == 'valu':
            for r in I_.defs: st.wr[r] = ('valu', st.pos, 'trans' if I_.is_trans() else '')
        elif cls == 'salu':
            for r in I_.defs: st.wr[r] = ('salu', st.pos, '')
        elif cls == 'ds':
            for r in I_.defs: st.wr.pop(r, None)
            st.ldsq.append({'defs': set(I_.defs)})
        elif cls == 'smem':
            for r in I_.defs: st.wr.pop(r, None)
            st.ldsq.append({'defs': set(I_.defs), 'smem': True})
        elif cls in ('vmem', 'dma'):
            for r in I_.defs: st.wr.pop(r, None)
            st.vmq.append({'defs': set(I_.defs), 'tag': I_.tag})
            if I_.op.startswith('buffer_store') and ('x3' in I_.op or 'x4' in I_.op):
                st.store.append((I_.ops[0].regs(), st.pos)); st.store = st.store[-4:]
        elif cls == 'barrier':
            pass
    return out, ins_at, st

def _apply_wait(st, w):
    if w.lgkm is not None:
        if w.lgkm == 0: st.ldsq = []
        else:
            if not any(e.get('smem') for e in st.ldsq):
                st.ldsq = st.ldsq[len(st.ldsq) - w.lgkm:] if len(st.ldsq) > w.lgkm else st.ldsq
    if w.vm is not None:
        st.vmq = st.vmq[len(st.vmq) - w.vm:] if len(st.vmq) > w.vm else st.vmq

def finalize(pre, body=None, post=None, head=None, branch=None):
    if body is None:
        out, _, _ = run_pass(pre)
        return out
    body = list(body)
    for it in range(20):
        seq = list(pre) + [label(head)] + body + list(branch) + body + list(branch) + list(post)
        out, ins_at, _ = run_pass(seq)
        n0 = len(pre) + 1
        nb = len(body) + len(branch)
        changed = {}
        for idx, val in ins_at.items():
            if n0 <= idx < n0 + 2 * nb:
                j = (idx - n0) % nb
                if j in changed:
                    o = changed[j]
                    lg = min([x for x in (o[0], val[0]) if x is not None], default=None)
                    vm = min([x for x in (o[1], val[1]) if x is not None], default=None)
                    changed[j] = (lg, vm, max(o[2], val[2]))
                else: changed[j] = val
        if not changed: break
        nbody, nbr = list(body), list(branch)
        for j in sorted(changed, reverse=True):
            lg, vm, nn = changed[j]
            add = []
            if lg is not None or vm is not None: add.append(waitcnt(vm, lg))
            k = nn
            while k > 0:
                add.append(nop(min(k, 16))); k -= 16
            if j < len(body): nbody[j:j] = add
            else: nbr[j - len(body):j - len(body)] = add
        body, branch = nbody, nbr
    else:
        raise RuntimeError('loop wait fix-point did not converge')
    out1, ins_at, st = run_pass(list(pre) + [label(head)] + body + list(branch))
    _, ins2, st2 = run_pass(body + list(branch), st)
    assert not ins2, ins2
    out2, _, _ = run_pass(list(post), st2)
    return out1 + out2

def emit(lst):
    return '\n'.join(i.text() for i in lst) + '\n'
```

```python
import math, sys, struct
from asmcore import *

C_SCALE = math.log2(math.e) / math.sqrt(128.0)
def f32bits(x): return struct.unpack('<I', struct.pack('<f', x))[0]

vTID = v(0)
vQ = v(16, 32)
vSall = v(48, 64)
vS = [v(48, 32), v(80, 32)]
vP = v(112, 16)
vO = v(128, 64)
vKF = [v(192 + 4 * i, 4) for i in range(4)]
vVF = [v(208 + 4 * i, 4) for i in range(4)]
vKA = [v(224 + i) for i in range(8)]
vVA = [v(232 + i) for i in range(4)]
vOffK, vOffV = v(236), v(237)
vM, vL, vMC, vAl = v(238), v(239), v(240), v(241)
vT = [v(242 + i) for i in range(12)]
vOffK2 = v(254)
vRow = v(255)
NVGPR = 256

sKP, sVP, sWS = s(4, 2), s(6, 2), s(8, 2)
srdK, srdV, srdO = s(12, 4), s(16, 4), s(24, 4)
sCnt, sKoff, sSlot, sW2048, sC, sTmp, sTmp2 = s(28), s(29), s(30), s(31), s(32), s(33), s(34)
sM0V = s(35)
sXP, sWQP = s(40, 2), s(42, 2)
srdX, srdWQ = s(44, 4), s(48, 4)

VREG = 65536
WS_O = 0

def mfma32(d, a_, b_, c_): return I('v_mfma_f32_32x32x16_bf16', d, a_, b_, c_)

def setup():
    L = []; A = L.append
    A(I('s_cmp_ge_u32', s(2), 512)); A(I('s_cbranch_scc1', 'L_end'))
    A(I('s_lshr_b32', sTmp, s(2), 8))
    A(I('s_mul_i32', sTmp2, sTmp, 40))
    A(I('s_load_dwordx2', sXP, s(0, 2), sTmp2))
    A(I('s_add_u32', sTmp2, sTmp2, 8)); A(I('s_load_dwordx2', sKP, s(0, 2), sTmp2))
    A(I('s_add_u32', sTmp2, sTmp2, 8)); A(I('s_load_dwordx2', sVP, s(0, 2), sTmp2))
    A(I('s_add_u32', sTmp2, sTmp2, 8)); A(I('s_load_dwordx2', sWQP, s(0, 2), sTmp2))
    A(I('s_load_dwordx2', sWS, s(0, 2), 96))
    A(waitcnt(lgkm=0))
    A(I('s_and_b32', sTmp2, s(2), 255)); A(I('s_lshl_b32', s(36), sTmp2, 18))
    A(I('s_add_u32', srdK[0], sKP[0], s(36))); A(I('s_addc_u32', srdK[1], sKP[1], 0))
    A(I('s_mov_b32', srdK[2], 262144)); A(I('s_mov_b32', srdK[3], 0x00020000))
    A(I('s_add_u32', srdV[0], sVP[0], s(36))); A(I('s_addc_u32', srdV[1], sVP[1], 0))
    A(I('s_mov_b32', srdV[2], 262144)); A(I('s_mov_b32', srdV[3], 0x00020000))
    A(I('s_lshr_b32', s(36), s(2), 5)); A(I('s_and_b32', s(36), s(36), 7))
    A(I('s_mul_i32', s(37), s(36), 307200))
    A(I('s_add_u32', srdX[0], sXP[0], s(37))); A(I('s_addc_u32', srdX[1], sXP[1], 0))
    A(I('s_mov_b32', srdX[2], 307200)); A(I('s_mov_b32', srdX[3], 0x00020000))
    A(I('s_mul_i32', s(36), s(36), 240))
    A(I('s_mul_i32', s(37), sTmp, 1920)); A(I('s_add_u32', s(36), s(36), s(37)))
    A(I('s_lshl_b32', s(36), s(36), 13))
    A(I('s_and_b32', s(37), s(2), 31)); A(I('s_lshl_b32', s(37), s(37), 8))
    A(I('s_add_u32', s(36), s(36), s(37)))
    A(I('s_add_u32', srdO[0], sWS[0], s(36))); A(I('s_addc_u32', srdO[1], sWS[1], 0))
    A(I('s_mov_b32', srdO[2], 239 * 8192 + 256)); A(I('s_mov_b32', srdO[3], 0x00020000))
    A(I('s_add_u32', srdWQ[0], sWQP[0], s(37))); A(I('s_addc_u32', srdWQ[1], sWQP[1], 0))
    A(I('s_mov_b32', srdWQ[2], 639 * 8192 + 256)); A(I('s_mov_b32', srdWQ[3], 0x00020000))
    A(I('s_mov_b32', sC, f32bits(C_SCALE)))
    l, w, t0, t1, t2, t3 = vT[0], vT[1], vT[2], vT[3], vT[4], vT[5]
    A(I('v_and_b32', l, 63, vTID)); A(I('v_lshrrev_b32', w, 6, vTID))
    A(I('v_readfirstlane_b32', sTmp, w)); A(I('s_lshl_b32', sW2048, sTmp, 11))
    A(I('v_and_b32', t0, 31, l)); A(I('v_lshlrev_b32', t0, 8, t0))
    A(I('v_lshrrev_b32', t1, 5, l)); A(I('v_and_b32', t2, 1, l)); A(I('v_xor_b32', t1, t1, t2))
    A(I('v_lshlrev_b32', t1, 4, t1)); A(I('v_add_u32', t0, t0, t1))
    A(I('v_and_b32', t1, 15, l)); A(I('v_lshrrev_b32', t1, 1, t1)); A(I('v_lshlrev_b32', t1, 5, t1))
    A(I('v_add_u32', t0, t0, t1))
    for kk in range(8):
        A(I('v_xor_b32', vKA[kk], kk << 5, t0))
    A(I('v_bfe_u32', t1, l, 2, 2))
    A(I('v_bfe_u32', t2, l, 4, 1)); A(I('v_lshlrev_b32', t2, 5, t2))
    A(I('v_and_b32', t3, 3, l)); A(I('v_lshlrev_b32', t3, 3, t3)); A(I('v_add_u32', t2, t2, t3))
    A(I('v_add_u32', t2, VREG, t2))
    A(I('v_lshrrev_b32', t0, 5, l)); A(I('v_lshlrev_b32', t0, 2, t0)); A(I('v_add_u32', t0, t0, t1))
    A(I('v_lshlrev_b32', t0, 8, t0)); A(I('v_add_u32', t0, t0, t2))
    A(I('v_lshrrev_b32', t3, 5, l)); A(I('v_lshlrev_b32', t3, 3, t3)); A(I('v_add_u32', t3, t3, t1))
    A(I('v_lshlrev_b32', t3, 8, t3)); A(I('v_add_u32', t3, t3, t2))
    for db in range(4):
        A(I('v_xor_b32', t2, db, t1)); A(I('v_lshlrev_b32', t2, 6, t2))
        A(I('v_add_u32', vVA[db], t0, t2)); A(I('v_add_u32', vKF[0][db], t3, t2))
    A(I('v_lshlrev_b32', t0, 3, w)); A(I('v_lshrrev_b32', t1, 4, l)); A(I('v_add_u32', t0, t0, t1))
    A(I('v_and_b32', t1, 15, l))
    A(I('v_and_b32', t2, 15, t0)); A(I('v_xor_b32', t2, t2, t1)); A(I('v_lshlrev_b32', t2, 4, t2))
    A(I('v_lshlrev_b32', t3, 8, t0)); A(I('v_add_u32', vOffK, t3, t2))
    A(I('v_add_u32', t2, 4, t0)); A(I('v_and_b32', t2, 15, t2)); A(I('v_xor_b32', t2, t2, t1)); A(I('v_lshlrev_b32', t2, 4, t2))
    A(I('v_add_u32', vOffK2, t3, t2))
    A(I('v_and_b32', t2, 3, t0)); A(I('v_lshlrev_b32', t2, 2, t2)); A(I('v_xor_b32', t2, t2, t1))
    A(I('v_lshlrev_b32', t2, 4, t2)); A(I('v_add_u32', vOffV, t3, t2))
    A(I('v_lshlrev_b32', t3, 13, t0)); A(I('v_add_u32', vKF[1][0], t3, t2))
    A(I('v_lshlrev_b32', t0, 5, w)); A(I('v_and_b32', t1, 31, l)); A(I('v_add_u32', t0, t0, t1))
    A(I('v_mul_u32_u24', t1, 1280, t0)); A(I('v_lshrrev_b32', t2, 5, l)); A(I('v_lshlrev_b32', t2, 4, t2))
    A(I('v_add_u32', vKF[1][1], t1, t2))
    A(I('v_lshlrev_b32', t1, 13, t0)); A(I('v_add_u32', vRow, t1, t2))
    return L

def dma_k(koff, m0k, tag='dma'):
    return [I('s_mov_b32', M0, m0k),
            I('buffer_load_dwordx4', vOffK, srdK, koff, mods='offen lds', tag=tag),
            I('buffer_load_dwordx4', vOffK2, srdK, koff, mods='offen offset:1024 lds', tag=tag)]
def dma_v(voff, m0k, tag='dma'):
    return [I('s_add_u32', sM0V, m0k, VREG), I('s_mov_b32', M0, sM0V),
            I('buffer_load_dwordx4', vOffV, srdV, voff, mods='offen lds', tag=tag),
            I('buffer_load_dwordx4', vOffV, srdV, voff, mods='offen offset:1024 lds', tag=tag)]

def qproj():
    L = []; A = L.append
    vWoff, vXoff = vKF[1][0], vKF[1][1]
    va = vKF[0]
    def dma_wq(kt):
        slot = (kt % 4) * 16384
        return [I('s_add_u32', sTmp, sW2048, VREG + slot), I('s_mov_b32', M0, sTmp),
                I('s_mov_b32', sTmp2, kt * 64 * 8192),
                I('buffer_load_dwordx4', vWoff, srdWQ, sTmp2, mods='offen lds', tag=f'wq{kt}'),
                I('s_add_u32', sTmp, sTmp, 1024), I('s_mov_b32', M0, sTmp),
                I('s_add_u32', sTmp2, sTmp2, 4 * 8192),
                I('buffer_load_dwordx4', vWoff, srdWQ, sTmp2, mods='offen lds', tag=f'wq{kt}')]
    def xbuf(kt): return vSall[16 * (kt % 4):16 * (kt % 4) + 16]
    def xload(kt):
        return [I('buffer_load_dwordx4', xbuf(kt)[4 * kb:4 * kb + 4], vXoff, srdX, 0, mods=f'offen offset:{(4 * kt + kb) * 32}')
                for kb in range(4)]
    for kt in range(3): L += dma_wq(kt)
    for kt in range(3): L += xload(kt)
    for kt in range(10):
        A(WaitTag(f'wq{kt}')); A(I('s_barrier'))
        if kt + 3 < 10: L += dma_wq(kt + 3) + xload(kt + 3)
        slot = (kt % 4) * 16384
        seq = [(kb, db) for kb in range(4) for db in range(4)]
        def rd(i):
            kb, db = seq[i]; f = vVF[i % 4]
            return [I('ds_read_b64_tr_b16', f[0:2], va[db], mods=f'offset:{slot + kb * 4096}'),
                    I('ds_read_b64_tr_b16', f[2:4], va[db], mods=f'offset:{slot + kb * 4096 + 1024}')]
        for i, (kb, db) in enumerate(seq):
            if i == 0:
                for j in range(3): L += rd(j)
            if i + 3 < 16: L += rd(i + 3)
            acc = vO[16 * db:16 * db + 16]
            A(mfma32(acc, vVF[i % 4], xbuf(kt)[4 * kb:4 * kb + 4], acc if (kt or kb) else 0))
    for kk in range(8):
        db, a0 = kk // 2, 2 * (kk % 2)
        r0 = 16 * db + 4 * a0
        for j in range(4):
            A(I('v_cvt_pk_bf16_f32', vQ[4 * kk + j], vO[r0 + 2 * j], vO[r0 + 2 * j + 1]))
        A(I('v_permlane32_swap_b32', vQ[4 * kk], vQ[4 * kk + 2]))
        A(I('v_permlane32_swap_b32', vQ[4 * kk + 1], vQ[4 * kk + 3]))
    return L

def qk_groups(Sd, slot_imm):
    G = []
    seq = [(kb, kk) for kb in range(2) for kk in range(8)]
    def rd(i):
        kb, kk = seq[i]
        return I('ds_read_b128', vKF[i % 4], vKA[kk], mods=f'offset:{slot_imm + kb * 8192}')
    D = 3
    for i, (kb, kk) in enumerate(seq):
        pre = []
        if i == 0: pre += [rd(j) for j in range(D)]
        if i + D < len(seq): pre.append(rd(i + D))
        acc = Sd[16 * kb:16 * kb + 16]
        G.append(pre + [mfma32(acc, vKF[i % 4], vQ[4 * kk:4 * kk + 4], acc if kk else 0)])
    return G

def pv_groups(slot_imm):
    G = []
    seq = [(kb, db) for kb in range(4) for db in range(4)]
    def rd(i):
        kb, db = seq[i]
        f = vVF[i % 4]
        return [I('ds_read_b64_tr_b16', f[0:2], vVA[db], mods=f'offset:{slot_imm + kb * 4096}'),
                I('ds_read_b64_tr_b16', f[2:4], vVA[db], mods=f'offset:{slot_imm + kb * 4096 + 2048}')]
    D = 3
    for i, (kb, db) in enumerate(seq):
        pre = []
        if i == 0:
            for j in range(D): pre += rd(j)
        if i + D < len(seq): pre += rd(i + D)
        acc = vO[16 * db:16 * db + 16]
        G.append(pre + [mfma32(acc, vVF[i % 4], vP[4 * kb:4 * kb + 4], acc)])
    return G

def max_block(Sc):
    L = []; A = L.append
    t = vT
    A(I('v_max3_f32', t[0], Sc[0], Sc[1], Sc[2])); A(I('v_max3_f32', t[1], Sc[3], Sc[4], Sc[5]))
    for j in range(6, 32, 4):
        A(I('v_max3_f32', t[0], t[0], Sc[j], Sc[j + 1]))
        if j + 3 < 32: A(I('v_max3_f32', t[1], t[1], Sc[j + 2], Sc[j + 3]))
    A(I('v_max_f32', t[0], t[0], t[1]))
    A(I('v_mov_b32', t[1], t[0]))
    A(I('v_permlane32_swap_b32', t[0], t[1]))
    A(I('v_max3_f32', t[0], t[0], t[1], vM))
    A(I('v_sub_f32', t[1], vM, t[0]))
    A(I('v_mul_f32', t[1], sC, t[1]))
    A(I('v_exp_f32', vAl, t[1]))
    A(I('v_mov_b32', vM, t[0]))
    A(I('v_mul_f32', vMC, sC, t[0]))
    return L

def fma_neg(d, a_, b_, c_):
    i = I('v_fma_f32', d, a_, b_, c_)
    i.ops[3] = '-' + str(c_)
    return i

def exp_block(Sc):
    L = []; A = L.append
    A(I('v_mul_f32', vL, vL, vAl))
    for j in range(0, 32, 2):
        A(fma_neg(Sc[j], Sc[j], sC, vMC)); A(fma_neg(Sc[j + 1], Sc[j + 1], sC, vMC))
        A(I('v_exp_f32', Sc[j], Sc[j])); A(I('v_exp_f32', Sc[j + 1], Sc[j + 1]))
        A(I('v_add_f32', vL, vL, Sc[j])); A(I('v_add_f32', vL, vL, Sc[j + 1]))
        A(I('v_cvt_pk_bf16_f32', vP[j // 2], Sc[j], Sc[j + 1]))
    return L

def rescale_block():
    return [I('v_mul_f32', vO[i], vO[i], vAl) for i in range(64)]

def weave(groups, fillers):
    out = []
    n = len(groups); k = len(fillers); done = 0
    for i, g in enumerate(groups):
        out += g
        upto = (i + 1) * k // n
        out += fillers[done:upto]; done = upto
    return out

def iteration(Sc, Sn, kslot_imm, vslot_imm, do_qk=True):
    L = []
    L += max_block(Sc)
    fill = rescale_block() + exp_block(Sc)
    if do_qk: L += weave(qk_groups(Sn, kslot_imm), fill)
    else: L += fill
    L += weave(pv_groups(vslot_imm), [])
    return L

def stage_sync(dma=True):
    L = [waitcnt(vm=8), I('s_barrier')]
    if dma:
        L += [I('s_add_u32', sSlot, sSlot, 16384), I('s_and_b32', sSlot, sSlot, 0xffff),
              I('s_add_u32', sTmp, sSlot, sW2048),
              I('s_add_u32', sKoff, sKoff, 16384), I('s_sub_u32', sTmp2, sKoff, 16384)]
        L += dma_k(sKoff, sTmp) + dma_v(sTmp2, sTmp)
    return L

def toggle():
    return [I('v_xor_b32', r, 0x8000, r) for r in vKA + vVA]

def epilogue():
    L = []; A = L.append
    t = vT
    A(I('v_mov_b32', t[0], vL)); A(I('v_mov_b32', t[1], vL))
    A(I('v_permlane32_swap_b32', t[0], t[1]))
    A(I('v_add_f32', t[0], t[0], t[1]))
    A(I('v_rcp_f32', t[0], t[0]))
    pk = vS[0]
    n = 0
    for db in range(4):
        for half in range(2):
            base = pk[n:n + 4]; n += 4
            for q in range(4):
                r = 16 * db + 8 * half + 2 * q
                A(I('v_mul_f32', vO[r], vO[r], t[0])); A(I('v_mul_f32', vO[r + 1], vO[r + 1], t[0]))
                A(I('v_cvt_pk_bf16_f32', base[q], vO[r], vO[r + 1]))
            A(I('buffer_store_dwordx4', base, vRow, srdO, 0, mods=f'offen offset:{64 * db + 32 * half}'))
    return L

def build():
    pre = setup()
    for u in range(4):
        pre += [I('s_add_u32', sTmp, sW2048, ((u + 1) % 4) * 16384), I('s_mov_b32', sKoff, u * 16384)]
        pre += dma_k(sKoff, sTmp, tag=f'k{u}')
    pre += qproj()
    pre += [I('s_barrier')]
    for u in range(1, 4):
        pre += [I('s_add_u32', sTmp, sW2048, ((u + 1) % 4) * 16384), I('s_mov_b32', sTmp2, (u - 1) * 16384)]
        pre += dma_v(sTmp2, sTmp)
    pre += [I('s_mov_b32', sSlot, 0), I('s_mov_b32', sKoff, 3 * 16384)]
    pre += [I('v_mov_b32', vM, 0xff800000), I('v_mov_b32', vL, 0)]
    pre += [I('v_mov_b32', vO[i], 0) for i in range(64)]
    for g in qk_groups(vS[0], 1 * 16384): pre += g
    pre += [I('s_mov_b32', sCnt, 0)] + toggle()
    pre += [waitcnt(vm=2), I('s_barrier')]
    pre += [I('s_add_u32', sSlot, sSlot, 16384), I('s_and_b32', sSlot, sSlot, 0xffff),
            I('s_add_u32', sTmp, sSlot, sW2048),
            I('s_add_u32', sKoff, sKoff, 16384), I('s_sub_u32', sTmp2, sKoff, 16384)]
    pre += dma_k(sKoff, sTmp) + dma_v(sTmp2, sTmp)
    body = []
    body += iteration(vS[0], vS[1], 0, 0) + stage_sync()
    body += iteration(vS[1], vS[0], 16384, 16384) + toggle() + stage_sync()
    branch = [I('s_add_u32', sCnt, sCnt, 1), I('s_cmp_lt_u32', sCnt, 7), I('s_cbranch_scc1', 'L_loop')]
    post = []
    post += iteration(vS[0], vS[1], 0, 0) + stage_sync(dma=False)
    post += iteration(vS[1], vS[0], 16384, 16384, do_qk=False)
    post += epilogue()
    post += [waitcnt(vm=0), label('L_end'), I('s_endpgm')]
    return finalize(pre, body, post, 'L_loop', branch)

def kernel_text(name='attn_kernel'):
    body = build()
    hdr = f'.globl {name}\n.p2align 8\n.type {name},@function\n{name}:\n'
    desc = f'''.p2align 6
.amdhsa_kernel {name}
  .amdhsa_next_free_vgpr {NVGPR}
  .amdhsa_next_free_sgpr 102
  .amdhsa_accum_offset {NVGPR}
  .amdhsa_group_segment_fixed_size 0
  .amdhsa_kernarg_size 104
  .amdhsa_user_sgpr_count 2
  .amdhsa_user_sgpr_kernarg_segment_ptr 1
  .amdhsa_system_sgpr_workgroup_id_x 1
.end_amdhsa_kernel
'''
    return hdr + emit(body), desc, len(body)

if __name__ == '__main__':
    code, desc, n = kernel_text()
    txt = '; @launch kernel=attn_kernel grid=(512,1,1) block=(512,1,1) lds=131072\n.amdgcn_target "amdgcn-amd-amdhsa--gfx950"\n.text\n' + code + '.section .rodata,"a"\n' + desc
    open(sys.argv[1] if len(sys.argv) > 1 else 'attn.test.s', 'w').write(txt)
    print('instructions:', n)
```

```python
import sys
from asmcore import *

NS = 4
SLOT = 20480
PD = 2
vTID = v(0)
vAcc = v(16, 40)
vAF = [v(56 + 4 * i, 4) for i in range(6)]
vB = v(80, 8 * 4 * (PD + 1))
vVoffW = [v(176 + j) for j in range(5)]
vVoffB = [v(181), v(182)]
vAA = v(183)
vAA2 = v(185)
vOutOff = v(184)
vT = [v(186 + i) for i in range(8)]
NVGPR = 200

sWOP, sWS, sOUT = s(4, 2), s(6, 2), s(8, 2)
srdW, srdB, srdOut = s(12, 4), s(16, 4), s(20, 4)
sCnt, sTmp, sTmp2, sW5120, sKW, sKB = s(28), s(29), s(30), s(31), s(32), s(33)

def mfma16(d, a_, b_, c_): return I('v_mfma_f32_16x16x32_bf16', d, a_, b_, c_)

def setup():
    L = []; A = L.append
    A(I('s_cmp_ge_u32', s(2), 256)); A(I('s_cbranch_scc1', 'L_oend'))
    A(I('s_and_b32', s(34), s(2), 7))
    A(I('s_lshr_b32', s(35), s(2), 3)); A(I('s_lshr_b32', s(37), s(35), 3)); A(I('s_and_b32', s(35), s(35), 7))
    A(I('s_lshr_b32', s(36), s(34), 2))
    A(I('s_mul_i32', sTmp, s(36), 40)); A(I('s_add_u32', sTmp, sTmp, 32))
    A(I('s_load_dwordx2', sWOP, s(0, 2), sTmp))
    A(I('s_load_dwordx2', sWS, s(0, 2), 96)); A(I('s_load_dwordx2', sOUT, s(0, 2), 80))
    A(waitcnt(lgkm=0))
    A(I('s_mul_i32', s(38), s(34), 480)); A(I('s_mul_i32', sTmp, s(37), 120)); A(I('s_add_u32', s(38), s(38), sTmp))
    A(I('s_mul_i32', sTmp, s(35), 160))
    A(I('s_add_u32', srdW[0], sWOP[0], sTmp)); A(I('s_addc_u32', srdW[1], sWOP[1], 0))
    A(I('s_mov_b32', srdW[2], 4095 * 1280 + 160)); A(I('s_mov_b32', srdW[3], 0x00020000))
    A(I('s_lshl_b32', sTmp, s(38), 13))
    A(I('s_add_u32', srdB[0], sWS[0], sTmp)); A(I('s_addc_u32', srdB[1], sWS[1], 0))
    A(I('s_mov_b32', srdB[2], 120 * 8192)); A(I('s_mov_b32', srdB[3], 0x00020000))
    A(I('s_mul_i32', sTmp, s(36), 1920)); A(I('s_sub_u32', sTmp, s(38), sTmp))
    A(I('s_mul_i32', sTmp, sTmp, 2560))
    A(I('s_mul_i32', sTmp2, s(36), 1280)); A(I('s_add_u32', sTmp, sTmp, sTmp2))
    A(I('s_mul_i32', sTmp2, s(35), 160)); A(I('s_add_u32', sTmp, sTmp, sTmp2))
    A(I('s_add_u32', srdOut[0], sOUT[0], sTmp)); A(I('s_addc_u32', srdOut[1], sOUT[1], 0))
    A(I('s_mov_b32', srdOut[2], 119 * 2560 + 160)); A(I('s_mov_b32', srdOut[3], 0x00020000))
    l, w, t0, t1, t2 = vT[0], vT[1], vT[2], vT[3], vT[4]
    A(I('v_and_b32', l, 63, vTID)); A(I('v_lshrrev_b32', w, 6, vTID))
    A(I('v_readfirstlane_b32', sTmp, w)); A(I('s_mul_i32', sW5120, sTmp, 5120))
    for j in range(5):
        A(I('v_lshlrev_b32', t0, 4, l)); A(I('v_add_u32', t0, 1024 * j, t0))
        A(I('v_mul_u32_u24', t1, 52429, t0)); A(I('v_lshrrev_b32', t1, 23, t1))
        A(I('v_mul_u32_u24', t2, 160, t1)); A(I('v_sub_u32', t0, t0, t2))
        A(I('v_lshlrev_b32', t2, 5, w)); A(I('v_add_u32', t1, t1, t2))
        A(I('v_mul_u32_u24', t1, 1280, t1)); A(I('v_add_u32', vVoffW[j], t1, t0))
    for mb in range(2):
        A(I('v_lshlrev_b32', t0, 5, w)); A(I('v_and_b32', t1, 15, l)); A(I('v_add_u32', t0, t0, t1))
        A(I('v_add_u32', t0, 16 * mb, t0)); A(I('v_lshlrev_b32', t0, 13, t0))
        A(I('v_lshrrev_b32', t1, 4, l)); A(I('v_lshlrev_b32', t1, 4, t1)); A(I('v_add_u32', vVoffB[mb], t0, t1))
    A(I('v_bfe_u32', t0, l, 4, 1)); A(I('v_lshlrev_b32', t0, 2, t0))
    A(I('v_bfe_u32', t1, l, 5, 1)); A(I('v_lshlrev_b32', t1, 4, t1)); A(I('v_add_u32', t0, t0, t1))
    A(I('v_bfe_u32', t1, l, 2, 2)); A(I('v_add_u32', t0, t0, t1)); A(I('v_mul_u32_u24', t0, 160, t0))
    A(I('v_and_b32', t1, 3, l)); A(I('v_lshlrev_b32', t1, 3, t1)); A(I('v_add_u32', vAA, t0, t1))
    A(I('v_add_u32', vAA2, 2 * SLOT, vAA))
    A(I('v_lshlrev_b32', t0, 5, w)); A(I('v_and_b32', t1, 15, l)); A(I('v_add_u32', t0, t0, t1))
    A(I('v_mul_u32_u24', t0, 2560, t0)); A(I('v_lshrrev_b32', t1, 4, l)); A(I('v_lshlrev_b32', t1, 3, t1))
    A(I('v_add_u32', vOutOff, t0, t1))
    return L

def dma_w(slot):
    L = []
    for j in range(5):
        L += [I('s_add_u32', sTmp, sW5120, slot * SLOT + j * 1024), I('s_mov_b32', M0, sTmp),
              I('buffer_load_dwordx4', vVoffW[j], srdW, sKW, mods='offen lds', tag=f'wo{slot}')]
    return L

def bbuf(ti):
    k = ti % (PD + 1)
    return vB[32 * k:32 * k + 32]

def bloads(ti):
    L = []
    for ks in range(4):
        for mb in range(2):
            L.append(I('buffer_load_dwordx4', bbuf(ti)[8 * ks + 4 * mb:8 * ks + 4 * mb + 4], vVoffB[mb], srdB, sKB,
                       mods=f'offen offset:{ks * 64}'))
    return L

def tile_compute(slot, ti):
    L = []
    seq = [(ks, nb) for ks in range(4) for nb in range(5)]
    def rd(i):
        ks, nb = seq[i]; f = vAF[i % 6]
        off = (slot % 2) * SLOT + ks * 5120 + nb * 32
        ar = vAA2 if slot >= 2 else vAA
        return [I('ds_read_b64_tr_b16', f[0:2], ar, mods=f'offset:{off}'),
                I('ds_read_b64_tr_b16', f[2:4], ar, mods=f'offset:{off + 1280}')]
    D = 3
    for i, (ks, nb) in enumerate(seq):
        if i == 0:
            for j in range(D): L += rd(j)
        if i + D < len(seq): L += rd(i + D)
        for mb in range(2):
            acc = vAcc[(mb * 5 + nb) * 4:(mb * 5 + nb) * 4 + 4]
            L.append(mfma16(acc, vAF[i % 6], bbuf(ti)[8 * ks + 4 * mb:8 * ks + 4 * mb + 4], acc))
    return L

def build():
    pre = setup()
    pre += [I('v_mov_b32', vAcc[i], 0) for i in range(40)]
    pre += [I('s_mov_b32', sKW, 0), I('s_mov_b32', sKB, 0)]
    for u in range(NS - 1):
        pre += dma_w(u) + [I('s_add_u32', sKW, sKW, 128 * 1280)]
    for u in range(PD):
        pre += bloads(u) + [I('s_add_u32', sKB, sKB, 256)]
    pre += [I('s_mov_b32', sCnt, 0)]
    def tile(i, last_dma, last_b):
        L = [WaitTag(f'wo{i % NS}'), I('s_barrier')]
        if not last_dma: L += dma_w((i + NS - 1) % NS) + [I('s_add_u32', sKW, sKW, 128 * 1280)]
        if not last_b: L += bloads(i + PD) + [I('s_add_u32', sKB, sKB, 256)]
        L += tile_compute(i % NS, i)
        return L
    U = 12
    body = []
    for i in range(U): body += tile(i, False, False)
    branch = [I('s_add_u32', sCnt, sCnt, 1), I('s_cmp_lt_u32', sCnt, 2), I('s_cbranch_scc1', 'L_oloop')]
    post = []
    for i in range(24, 32): post += tile(i, i + NS - 1 >= 32, i + PD >= 32)
    for mb in range(2):
        for nb in range(5):
            acc = vAcc[(mb * 5 + nb) * 4:(mb * 5 + nb) * 4 + 4]
            pk = vAF[(mb * 5 + nb) % 6][0:2]
            post += [I('v_cvt_pk_bf16_f32', pk[0], acc[0], acc[1]), I('v_cvt_pk_bf16_f32', pk[1], acc[2], acc[3]),
                     I('s_mov_b32', sTmp, mb * 16 * 2560),
                     I('buffer_store_dwordx2', pk, vOutOff, srdOut, sTmp, mods=f'offen offset:{nb * 32}')]
    post += [waitcnt(vm=0), label('L_oend'), I('s_endpgm')]
    return finalize(pre, body, post, 'L_oloop', branch)

def kernel_text(name='oproj_kernel'):
    body = build()
    hdr = f'.globl {name}\n.p2align 8\n.type {name},@function\n{name}:\n'
    desc = f'''.p2align 6
.amdhsa_kernel {name}
  .amdhsa_next_free_vgpr {NVGPR}
  .amdhsa_next_free_sgpr 102
  .amdhsa_accum_offset {NVGPR}
  .amdhsa_group_segment_fixed_size 0
  .amdhsa_kernarg_size 104
  .amdhsa_user_sgpr_count 2
  .amdhsa_user_sgpr_kernarg_segment_ptr 1
  .amdhsa_system_sgpr_workgroup_id_x 1
.end_amdhsa_kernel
'''
    return hdr + emit(body), desc, len(body)

if __name__ == '__main__':
    code, desc, n = kernel_text()
    txt = f'; @launch kernel=oproj_kernel grid=(256,1,1) block=(256,1,1) lds={NS * SLOT}\n.amdgcn_target "amdgcn-amd-amdhsa--gfx950"\n.text\n' + code + '.section .rodata,"a"\n' + desc
    open(sys.argv[1] if len(sys.argv) > 1 else 'oproj.test.s', 'w').write(txt)
    print('instructions:', n)
```

```python
import sys, importlib
import gen_attn, gen_oproj2
NAME = 'concat_heads__mha_block_cached__mha_block_cached__near_ridge'
ref = open(f'cdna_kernels/{NAME}.s.ref').read()
hdr = []
for ln in ref.split('\n'):
    if ln.startswith('; @launch'): break
    hdr.append(ln)
c1, d1, n1 = gen_attn.kernel_text('attn_kernel')
c2, d2, n2 = gen_oproj2.kernel_text('oproj_kernel')
txt = '\n'.join(hdr) + '\n'
txt += '; @launch kernel=attn_kernel grid=(512,1,1) block=(512,1,1) lds=131072\n'
txt += f'; @launch kernel=oproj_kernel grid=(256,1,1) block=(256,1,1) lds={gen_oproj2.LDS_BYTES}\n'
txt += '.amdgcn_target "amdgcn-amd-amdhsa--gfx950"\n.text\n' + c1 + c2 + '.section .rodata,"a"\n' + d1 + d2
out = sys.argv[1] if len(sys.argv) > 1 else f'cdna_kernels/{NAME}.s'
open(out, 'w').write(txt)
print(n1, n2, len(txt))
```

```python
import math, sys, struct
from asmcore import *

C_SCALE = math.log2(math.e) / math.sqrt(128.0)
def f32bits(x): return struct.unpack('<I', struct.pack('<f', x))[0]

vTID = v(0)
vQ = v(16, 32)
vSall = v(48, 64)
vS = [v(48, 32), v(80, 32)]
vP = v(112, 16)
vO = v(128, 64)
vKF = [v(192 + 4 * i, 4) for i in range(4)]
vVF = [v(208 + 4 * i, 4) for i in range(4)]
vKA = [v(224 + i) for i in range(8)]
vVA = [v(232 + i) for i in range(4)]
vOffK, vOffV = v(236), v(237)
vM, vL, vMC, vAl = v(238), v(239), v(240), v(241)
vT = [v(242 + i) for i in range(12)]
vOffK2 = v(254)
vRow = v(255)
NVGPR = 256

sKP, sVP, sWS = s(4, 2), s(6, 2), s(8, 2)
srdK, srdV, srdO = s(12, 4), s(16, 4), s(24, 4)
sCnt, sKoff, sSlot, sW2048, sC, sTmp, sTmp2 = s(28), s(29), s(30), s(31), s(32), s(33), s(34)
sM0V = s(35)
sXP, sWQP = s(40, 2), s(42, 2)
srdX, srdWQ = s(44, 4), s(48, 4)

VREG = 65536
WS_O = 0

def mfma32(d, a_, b_, c_): return I('v_mfma_f32_32x32x16_bf16', d, a_, b_, c_)

def setup():
    L = []; A = L.append
    A(I('s_cmp_ge_u32', s(2), 512)); A(I('s_cbranch_scc1', 'L_end'))
    A(I('s_lshr_b32', sTmp, s(2), 8))
    A(I('s_mul_i32', sTmp2, sTmp, 40))
    A(I('s_load_dwordx2', sXP, s(0, 2), sTmp2))
    A(I('s_add_u32', sTmp2, sTmp2, 8)); A(I('s_load_dwordx2', sKP, s(0, 2), sTmp2))
    A(I('s_add_u32', sTmp2, sTmp2, 8)); A(I('s_load_dwordx2', sVP, s(0, 2), sTmp2))
    A(I('s_add_u32', sTmp2, sTmp2, 8)); A(I('s_load_dwordx2', sWQP, s(0, 2), sTmp2))
    A(I('s_load_dwordx2', sWS, s(0, 2), 96))
    A(waitcnt(lgkm=0))
    A(I('s_and_b32', sTmp2, s(2), 255)); A(I('s_lshl_b32', s(36), sTmp2, 18))
    A(I('s_add_u32', srdK[0], sKP[0], s(36))); A(I('s_addc_u32', srdK[1], sKP[1], 0))
    A(I('s_mov_b32', srdK[2], 262144)); A(I('s_mov_b32', srdK[3], 0x00020000))
    A(I('s_add_u32', srdV[0], sVP[0], s(36))); A(I('s_addc_u32', srdV[1], sVP[1], 0))
    A(I('s_mov_b32', srdV[2], 262144)); A(I('s_mov_b32', srdV[3], 0x00020000))
    A(I('s_lshr_b32', s(36), s(2), 5)); A(I('s_and_b32', s(36), s(36), 7))
    A(I('s_mul_i32', s(37), s(36), 307200))
    A(I('s_add_u32', srdX[0], sXP[0], s(37))); A(I('s_addc_u32', srdX[1], sXP[1], 0))
    A(I('s_mov_b32', srdX[2], 307200)); A(I('s_mov_b32', srdX[3], 0x00020000))
    A(I('s_mul_i32', s(36), s(36), 240))
    A(I('s_mul_i32', s(37), sTmp, 1920)); A(I('s_add_u32', s(36), s(36), s(37)))
    A(I('s_lshl_b32', s(36), s(36), 13))
    A(I('s_and_b32', s(37), s(2), 31)); A(I('s_lshl_b32', s(38), s(37), 11))
    A(I('s_lshl_b32', s(37), s(37), 8))
    A(I('s_add_u32', s(36), s(36), s(38)))
    A(I('s_add_u32', srdO[0], sWS[0], s(36))); A(I('s_addc_u32', srdO[1], sWS[1], 0))
    A(I('s_mov_b32', srdO[2], 29 * 65536 + 2048)); A(I('s_mov_b32', srdO[3], 0x00020000))
    A(I('s_add_u32', srdWQ[0], sWQP[0], s(37))); A(I('s_addc_u32', srdWQ[1], sWQP[1], 0))
    A(I('s_mov_b32', srdWQ[2], 639 * 8192 + 256)); A(I('s_mov_b32', srdWQ[3], 0x00020000))
    A(I('s_mov_b32', sC, f32bits(C_SCALE)))
    l, w, t0, t1, t2, t3 = vT[0], vT[1], vT[2], vT[3], vT[4], vT[5]
    A(I('v_and_b32', l, 63, vTID)); A(I('v_lshrrev_b32', w, 6, vTID))
    A(I('v_readfirstlane_b32', sTmp, w)); A(I('s_lshl_b32', sW2048, sTmp, 11))
    A(I('v_and_b32', t0, 31, l)); A(I('v_lshlrev_b32', t0, 8, t0))
    A(I('v_lshrrev_b32', t1, 5, l)); A(I('v_and_b32', t2, 1, l)); A(I('v_xor_b32', t1, t1, t2))
    A(I('v_lshlrev_b32', t1, 4, t1)); A(I('v_add_u32', t0, t0, t1))
    A(I('v_and_b32', t1, 15, l)); A(I('v_lshrrev_b32', t1, 1, t1)); A(I('v_lshlrev_b32', t1, 5, t1))
    A(I('v_add_u32', t0, t0, t1))
    for kk in range(8):
        A(I('v_xor_b32', vKA[kk], kk << 5, t0))
    A(I('v_bfe_u32', t1, l, 2, 2))
    A(I('v_bfe_u32', t2, l, 4, 1)); A(I('v_lshlrev_b32', t2, 5, t2))
    A(I('v_and_b32', t3, 3, l)); A(I('v_lshlrev_b32', t3, 3, t3)); A(I('v_add_u32', t2, t2, t3))
    A(I('v_add_u32', t2, VREG, t2))
    A(I('v_lshrrev_b32', t0, 5, l)); A(I('v_lshlrev_b32', t0, 2, t0)); A(I('v_add_u32', t0, t0, t1))
    A(I('v_lshlrev_b32', t0, 8, t0)); A(I('v_add_u32', t0, t0, t2))
    A(I('v_lshrrev_b32', t3, 5, l)); A(I('v_lshlrev_b32', t3, 3, t3)); A(I('v_add_u32', t3, t3, t1))
    A(I('v_lshlrev_b32', t3, 8, t3)); A(I('v_add_u32', t3, t3, t2))
    for db in range(4):
        A(I('v_xor_b32', t2, db, t1)); A(I('v_lshlrev_b32', t2, 6, t2))
        A(I('v_add_u32', vVA[db], t0, t2)); A(I('v_add_u32', vKF[0][db], t3, t2))
    A(I('v_lshlrev_b32', t0, 3, w)); A(I('v_lshrrev_b32', t1, 4, l)); A(I('v_add_u32', t0, t0, t1))
    A(I('v_and_b32', t1, 15, l))
    A(I('v_and_b32', t2, 15, t0)); A(I('v_xor_b32', t2, t2, t1)); A(I('v_lshlrev_b32', t2, 4, t2))
    A(I('v_lshlrev_b32', t3, 8, t0)); A(I('v_add_u32', vOffK, t3, t2))
    A(I('v_add_u32', t2, 4, t0)); A(I('v_and_b32', t2, 15, t2)); A(I('v_xor_b32', t2, t2, t1)); A(I('v_lshlrev_b32', t2, 4, t2))
    A(I('v_add_u32', vOffK2, t3, t2))
    A(I('v_and_b32', t2, 3, t0)); A(I('v_lshlrev_b32', t2, 2, t2)); A(I('v_xor_b32', t2, t2, t1))
    A(I('v_lshlrev_b32', t2, 4, t2)); A(I('v_add_u32', vOffV, t3, t2))
    A(I('v_lshlrev_b32', t3, 13, t0)); A(I('v_add_u32', vKF[1][0], t3, t2))
    A(I('v_lshlrev_b32', t0, 5, w)); A(I('v_and_b32', t1, 31, l)); A(I('v_add_u32', t0, t0, t1))
    A(I('v_mul_u32_u24', t1, 1280, t0)); A(I('v_lshrrev_b32', t2, 5, l)); A(I('v_lshlrev_b32', t2, 4, t2))
    A(I('v_add_u32', vKF[1][1], t1, t2))
    A(I('v_lshrrev_b32', t1, 3, t0)); A(I('v_lshlrev_b32', t1, 16, t1))
    A(I('v_lshlrev_b32', t2, 3, t2)); A(I('v_add_u32', t1, t1, t2))
    A(I('v_and_b32', t2, 7, t0)); A(I('v_lshlrev_b32', t2, 4, t2)); A(I('v_add_u32', vRow, t1, t2))
    return L

def dma_k(koff, m0k, tag='dma'):
    return [I('s_mov_b32', M0, m0k),
            I('buffer_load_dwordx4', vOffK, srdK, koff, mods='offen lds', tag=tag),
            I('buffer_load_dwordx4', vOffK2, srdK, koff, mods='offen offset:1024 lds', tag=tag)]
def dma_v(voff, m0k, tag='dma'):
    return [I('s_add_u32', sM0V, m0k, VREG), I('s_mov_b32', M0, sM0V),
            I('buffer_load_dwordx4', vOffV, srdV, voff, mods='offen lds', tag=tag),
            I('buffer_load_dwordx4', vOffV, srdV, voff, mods='offen offset:1024 lds', tag=tag)]

def qproj():
    L = []; A = L.append
    vWoff, vXoff = vKF[1][0], vKF[1][1]
    va = vKF[0]
    def dma_wq(kt):
        slot = (kt % 4) * 16384
        return [I('s_add_u32', sTmp, sW2048, VREG + slot), I('s_mov_b32', M0, sTmp),
                I('s_mov_b32', sTmp2, kt * 64 * 8192),
                I('buffer_load_dwordx4', vWoff, srdWQ, sTmp2, mods='offen lds', tag=f'wq{kt}'),
                I('s_add_u32', sTmp, sTmp, 1024), I('s_mov_b32', M0, sTmp),
                I('s_add_u32', sTmp2, sTmp2, 4 * 8192),
                I('buffer_load_dwordx4', vWoff, srdWQ, sTmp2, mods='offen lds', tag=f'wq{kt}')]
    def xbuf(kt): return vSall[16 * (kt % 4):16 * (kt % 4) + 16]
    def xload(kt):
        return [I('buffer_load_dwordx4', xbuf(kt)[4 * kb:4 * kb + 4], vXoff, srdX, 0, mods=f'offen offset:{(4 * kt + kb) * 32}')
                for kb in range(4)]
    for kt in range(3): L += dma_wq(kt)
    for kt in range(3): L += xload(kt)
    for kt in range(10):
        A(WaitTag(f'wq{kt}')); A(I('s_barrier'))
        if kt + 3 < 10: L += dma_wq(kt + 3) + xload(kt + 3)
        slot = (kt % 4) * 16384
        seq = [(kb, db) for kb in range(4) for db in range(4)]
        def rd(i):
            kb, db = seq[i]; f = vVF[i % 4]
            return [I('ds_read_b64_tr_b16', f[0:2], va[db], mods=f'offset:{slot + kb * 4096}'),
                    I('ds_read_b64_tr_b16', f[2:4], va[db], mods=f'offset:{slot + kb * 4096 + 1024}')]
        for i, (kb, db) in enumerate(seq):
            if i == 0:
                for j in range(3): L += rd(j)
            if i + 3 < 16: L += rd(i + 3)
            acc = vO[16 * db:16 * db + 16]
            A(mfma32(acc, vVF[i % 4], xbuf(kt)[4 * kb:4 * kb + 4], acc if (kt or kb) else 0))
    for kk in range(8):
        db, a0 = kk // 2, 2 * (kk % 2)
        r0 = 16 * db + 4 * a0
        for j in range(4):
            A(I('v_cvt_pk_bf16_f32', vQ[4 * kk + j], vO[r0 + 2 * j], vO[r0 + 2 * j + 1]))
        A(I('v_permlane32_swap_b32', vQ[4 * kk], vQ[4 * kk + 2]))
        A(I('v_permlane32_swap_b32', vQ[4 * kk + 1], vQ[4 * kk + 3]))
    return L

def qk_groups(Sd, slot_imm):
    G = []
    seq = [(kb, kk) for kb in range(2) for kk in range(8)]
    def rd(i):
        kb, kk = seq[i]
        return I('ds_read_b128', vKF[i % 4], vKA[kk], mods=f'offset:{slot_imm + kb * 8192}')
    D = 3
    for i, (kb, kk) in enumerate(seq):
        pre = []
        if i == 0: pre += [rd(j) for j in range(D)]
        if i + D < len(seq): pre.append(rd(i + D))
        acc = Sd[16 * kb:16 * kb + 16]
        G.append(pre + [mfma32(acc, vKF[i % 4], vQ[4 * kk:4 * kk + 4], acc if kk else 0)])
    return G

def pv_groups(slot_imm):
    G = []
    seq = [(kb, db) for kb in range(4) for db in range(4)]
    def rd(i):
        kb, db = seq[i]
        f = vVF[i % 4]
        return [I('ds_read_b64_tr_b16', f[0:2], vVA[db], mods=f'offset:{slot_imm + kb * 4096}'),
                I('ds_read_b64_tr_b16', f[2:4], vVA[db], mods=f'offset:{slot_imm + kb * 4096 + 2048}')]
    D = 3
    for i, (kb, db) in enumerate(seq):
        pre = []
        if i == 0:
            for j in range(D): pre += rd(j)
        if i + D < len(seq): pre += rd(i + D)
        acc = vO[16 * db:16 * db + 16]
        G.append(pre + [mfma32(acc, vVF[i % 4], vP[4 * kb:4 * kb + 4], acc)])
    return G

def max_block(Sc):
    L = []; A = L.append
    t = vT
    A(I('v_max3_f32', t[0], Sc[0], Sc[1], Sc[2])); A(I('v_max3_f32', t[1], Sc[3], Sc[4], Sc[5]))
    for j in range(6, 32, 4):
        A(I('v_max3_f32', t[0], t[0], Sc[j], Sc[j + 1]))
        if j + 3 < 32: A(I('v_max3_f32', t[1], t[1], Sc[j + 2], Sc[j + 3]))
    A(I('v_max_f32', t[0], t[0], t[1]))
    A(I('v_mov_b32', t[1], t[0]))
    A(I('v_permlane32_swap_b32', t[0], t[1]))
    A(I('v_max3_f32', t[0], t[0], t[1], vM))
    A(I('v_sub_f32', t[1], vM, t[0]))
    A(I('v_mul_f32', t[1], sC, t[1]))
    A(I('v_exp_f32', vAl, t[1]))
    A(I('v_mov_b32', vM, t[0]))
    A(I('v_mul_f32', vMC, sC, t[0]))
    return L

def fma_neg(d, a_, b_, c_):
    i = I('v_fma_f32', d, a_, b_, c_)
    i.ops[3] = '-' + str(c_)
    return i

def exp_block(Sc):
    L = []; A = L.append
    A(I('v_mul_f32', vL, vL, vAl))
    for j in range(0, 32, 2):
        A(fma_neg(Sc[j], Sc[j], sC, vMC)); A(fma_neg(Sc[j + 1], Sc[j + 1], sC, vMC))
        A(I('v_exp_f32', Sc[j], Sc[j])); A(I('v_exp_f32', Sc[j + 1], Sc[j + 1]))
        A(I('v_add_f32', vL, vL, Sc[j])); A(I('v_add_f32', vL, vL, Sc[j + 1]))
        A(I('v_cvt_pk_bf16_f32', vP[j // 2], Sc[j], Sc[j + 1]))
    return L

def rescale_block():
    return [I('v_mul_f32', vO[i], vO[i], vAl) for i in range(64)]

def weave(groups, fillers):
    out = []
    n = len(groups); k = len(fillers); done = 0
    for i, g in enumerate(groups):
        out += g
        upto = (i + 1) * k // n
        out += fillers[done:upto]; done = upto
    return out

def iteration(Sc, Sn, kslot_imm, vslot_imm, do_qk=True):
    L = []
    L += max_block(Sc)
    fill = rescale_block() + exp_block(Sc)
    if do_qk: L += weave(qk_groups(Sn, kslot_imm), fill)
    else: L += fill
    L += weave(pv_groups(vslot_imm), [])
    return L

def stage_sync(dma=True):
    L = [waitcnt(vm=8), I('s_barrier')]
    if dma:
        L += [I('s_add_u32', sSlot, sSlot, 16384), I('s_and_b32', sSlot, sSlot, 0xffff),
              I('s_add_u32', sTmp, sSlot, sW2048),
              I('s_add_u32', sKoff, sKoff, 16384), I('s_sub_u32', sTmp2, sKoff, 16384)]
        L += dma_k(sKoff, sTmp) + dma_v(sTmp2, sTmp)
    return L

def toggle():
    return [I('v_xor_b32', r, 0x8000, r) for r in vKA + vVA]

def epilogue():
    L = []; A = L.append
    t = vT
    A(I('v_mov_b32', t[0], vL)); A(I('v_mov_b32', t[1], vL))
    A(I('v_permlane32_swap_b32', t[0], t[1]))
    A(I('v_add_f32', t[0], t[0], t[1]))
    A(I('v_rcp_f32', t[0], t[0]))
    pk = vS[0]
    n = 0
    for db in range(4):
        for half in range(2):
            base = pk[n:n + 4]; n += 4
            for q in range(4):
                r = 16 * db + 8 * half + 2 * q
                A(I('v_mul_f32', vO[r], vO[r], t[0])); A(I('v_mul_f32', vO[r + 1], vO[r + 1], t[0]))
                A(I('v_cvt_pk_bf16_f32', base[q], vO[r], vO[r + 1]))
            A(I('buffer_store_dwordx4', base, vRow, srdO, 0, mods=f'offen offset:{512 * db + 256 * half}'))
    return L

def build():
    pre = setup()
    for u in range(4):
        pre += [I('s_add_u32', sTmp, sW2048, ((u + 1) % 4) * 16384), I('s_mov_b32', sKoff, u * 16384)]
        pre += dma_k(sKoff, sTmp, tag=f'k{u}')
    pre += qproj()
    pre += [I('s_barrier')]
    for u in range(1, 4):
        pre += [I('s_add_u32', sTmp, sW2048, ((u + 1) % 4) * 16384), I('s_mov_b32', sTmp2, (u - 1) * 16384)]
        pre += dma_v(sTmp2, sTmp)
    pre += [I('s_mov_b32', sSlot, 0), I('s_mov_b32', sKoff, 3 * 16384)]
    pre += [I('v_mov_b32', vM, 0xff800000), I('v_mov_b32', vL, 0)]
    pre += [I('v_mov_b32', vO[i], 0) for i in range(64)]
    for g in qk_groups(vS[0], 1 * 16384): pre += g
    pre += [I('s_mov_b32', sCnt, 0)] + toggle()
    pre += [waitcnt(vm=2), I('s_barrier')]
    pre += [I('s_add_u32', sSlot, sSlot, 16384), I('s_and_b32', sSlot, sSlot, 0xffff),
            I('s_add_u32', sTmp, sSlot, sW2048),
            I('s_add_u32', sKoff, sKoff, 16384), I('s_sub_u32', sTmp2, sKoff, 16384)]
    pre += dma_k(sKoff, sTmp) + dma_v(sTmp2, sTmp)
    body = []
    body += iteration(vS[0], vS[1], 0, 0) + stage_sync()
    body += iteration(vS[1], vS[0], 16384, 16384) + toggle() + stage_sync()
    branch = [I('s_add_u32', sCnt, sCnt, 1), I('s_cmp_lt_u32', sCnt, 7), I('s_cbranch_scc1', 'L_loop')]
    post = []
    post += iteration(vS[0], vS[1], 0, 0) + stage_sync(dma=False)
    post += iteration(vS[1], vS[0], 16384, 16384, do_qk=False)
    post += epilogue()
    post += [waitcnt(vm=0), label('L_end'), I('s_endpgm')]
    return finalize(pre, body, post, 'L_loop', branch)

def kernel_text(name='attn_kernel'):
    body = build()
    hdr = f'.globl {name}\n.p2align 8\n.type {name},@function\n{name}:\n'
    desc = f'''.p2align 6
.amdhsa_kernel {name}
  .amdhsa_next_free_vgpr {NVGPR}
  .amdhsa_next_free_sgpr 102
  .amdhsa_accum_offset {NVGPR}
  .amdhsa_group_segment_fixed_size 0
  .amdhsa_kernarg_size 104
  .amdhsa_user_sgpr_count 2
  .amdhsa_user_sgpr_kernarg_segment_ptr 1
  .amdhsa_system_sgpr_workgroup_id_x 1
.end_amdhsa_kernel
'''
    return hdr + emit(body), desc, len(body)

if __name__ == '__main__':
    code, desc, n = kernel_text()
    txt = '; @launch kernel=attn_kernel grid=(512,1,1) block=(512,1,1) lds=131072\n.amdgcn_target "amdgcn-amd-amdhsa--gfx950"\n.text\n' + code + '.section .rodata,"a"\n' + desc
    open(sys.argv[1] if len(sys.argv) > 1 else 'attn.test.s', 'w').write(txt)
    print('instructions:', n)
```

```python
import sys, os
from asmcore import *
EXP = os.environ.get('OEXP', '')

NS = 4
SLOT = 5120
WREG = NS * SLOT
PD = 3
LDS_BYTES = 4 * 3 * 10240
vTID = v(0)
aAcc = a(0, 160)
vAF = [v(16 + 20 * i, 20) for i in range(2)]
vB = v(56, 32 * (PD + 1))
vVoffW = [v(184 + j) for j in range(5)]
vVoffB = v(189)
vAA = v(190)
vOutOff = v(191)
vRed = v(192)
vRed2 = v(193)
vT = [v(194 + i) for i in range(8)]
vE = v(204, 40)
NVGPR = 248

sWOP, sWS, sOUT = s(4, 2), s(6, 2), s(8, 2)
srdW, srdB, srdOut = s(12, 4), s(16, 4), s(20, 4)
sCnt, sTmp, sTmp2, sWR, sKW, sKB, sW = s(28), s(29), s(30), s(31), s(32), s(33), s(39)

def mfma16(d, a_, b_, c_): return I('v_mfma_f32_16x16x32_bf16', d, a_, b_, c_)

def setup():
    L = []; A = L.append
    A(I('s_cmp_ge_u32', s(2), 256)); A(I('s_cbranch_scc1', 'L_oend'))
    A(I('s_and_b32', s(34), s(2), 7))
    A(I('s_lshr_b32', s(35), s(2), 3)); A(I('s_lshr_b32', s(37), s(35), 3)); A(I('s_and_b32', s(35), s(35), 7))
    A(I('s_lshr_b32', s(36), s(34), 2))
    A(I('s_mul_i32', sTmp, s(36), 40)); A(I('s_add_u32', sTmp, sTmp, 32))
    A(I('s_load_dwordx2', sWOP, s(0, 2), sTmp))
    A(I('s_load_dwordx2', sWS, s(0, 2), 96)); A(I('s_load_dwordx2', sOUT, s(0, 2), 80))
    A(waitcnt(lgkm=0))
    A(I('s_mul_i32', s(38), s(34), 480)); A(I('s_mul_i32', sTmp, s(37), 120)); A(I('s_add_u32', s(38), s(38), sTmp))
    A(I('s_mul_i32', sTmp, s(35), 160))
    A(I('s_add_u32', srdW[0], sWOP[0], sTmp)); A(I('s_addc_u32', srdW[1], sWOP[1], 0))
    A(I('s_mov_b32', srdW[2], 4095 * 1280 + 160)); A(I('s_mov_b32', srdW[3], 0x00020000))
    A(I('s_lshl_b32', sTmp, s(38), 13))
    A(I('s_add_u32', srdB[0], sWS[0], sTmp)); A(I('s_addc_u32', srdB[1], sWS[1], 0))
    A(I('s_mov_b32', srdB[2], 120 * 8192)); A(I('s_mov_b32', srdB[3], 0x00020000))
    A(I('s_mul_i32', sTmp, s(36), 1920)); A(I('s_sub_u32', sTmp, s(38), sTmp))
    A(I('s_mul_i32', sTmp, sTmp, 2560))
    A(I('s_mul_i32', sTmp2, s(36), 1280)); A(I('s_add_u32', sTmp, sTmp, sTmp2))
    A(I('s_mul_i32', sTmp2, s(35), 160)); A(I('s_add_u32', sTmp, sTmp, sTmp2))
    A(I('s_add_u32', srdOut[0], sOUT[0], sTmp)); A(I('s_addc_u32', srdOut[1], sOUT[1], 0))
    A(I('s_mov_b32', srdOut[2], 119 * 2560 + 160)); A(I('s_mov_b32', srdOut[3], 0x00020000))
    l, w, t0, t1, t2 = vT[0], vT[1], vT[2], vT[3], vT[4]
    A(I('v_and_b32', l, 63, vTID)); A(I('v_lshrrev_b32', w, 6, vTID))
    A(I('v_readfirstlane_b32', sW, w)); A(I('s_mul_i32', sWR, sW, WREG))
    for j in range(5):
        A(I('v_lshlrev_b32', t0, 4, l)); A(I('v_add_u32', t0, 1024 * j, t0))
        A(I('v_mul_u32_u24', t1, 52429, t0)); A(I('v_lshrrev_b32', t1, 23, t1))
        A(I('v_mul_u32_u24', t2, 160, t1)); A(I('v_sub_u32', t0, t0, t2))
        A(I('v_mul_u32_u24', t1, 1280, t1)); A(I('v_add_u32', vVoffW[j], t1, t0))
    A(I('v_bfe_u32', t0, l, 3, 1)); A(I('v_lshlrev_b32', t0, 16, t0))
    A(I('v_lshrrev_b32', t1, 4, l)); A(I('v_lshlrev_b32', t1, 7, t1)); A(I('v_add_u32', t0, t0, t1))
    A(I('v_and_b32', t1, 7, l)); A(I('v_lshlrev_b32', t1, 4, t1)); A(I('v_add_u32', vVoffB, t0, t1))
    A(I('v_bfe_u32', t0, l, 4, 1)); A(I('v_lshlrev_b32', t0, 2, t0))
    A(I('v_bfe_u32', t1, l, 5, 1)); A(I('v_lshlrev_b32', t1, 4, t1)); A(I('v_add_u32', t0, t0, t1))
    A(I('v_bfe_u32', t1, l, 2, 2)); A(I('v_add_u32', t0, t0, t1)); A(I('v_mul_u32_u24', t0, 160, t0))
    A(I('v_and_b32', t1, 3, l)); A(I('v_lshlrev_b32', t1, 3, t1)); A(I('v_add_u32', t0, t0, t1))
    A(I('v_add_u32', vAA, sWR, t0))
    A(I('v_lshlrev_b32', t0, 5, w)); A(I('v_and_b32', t1, 15, l)); A(I('v_add_u32', t0, t0, t1))
    A(I('v_mul_u32_u24', t0, 2560, t0)); A(I('v_lshrrev_b32', t1, 4, l)); A(I('v_lshlrev_b32', t1, 3, t1))
    A(I('v_add_u32', vOutOff, t0, t1))
    A(I('v_lshlrev_b32', vRed, 4, l)); A(I('v_add_u32', vRed2, 61440, vRed))
    A(I('s_mul_i32', sKW, sW, 1024 * 1280)); A(I('s_lshl_b32', sKB, sW, 14))
    return L

def dma_w(i):
    slot = i % NS
    L = []
    for j in range(5):
        L += [I('s_add_u32', sTmp, sWR, slot * SLOT + j * 1024), I('s_mov_b32', M0, sTmp),
              I('buffer_load_dwordx4', vVoffW[j], srdW, sKW, mods='offen lds', tag=f'wo{slot}')]
    return L + [I('s_add_u32', sKW, sKW, 32 * 1280)]

def bbuf(i): return vB[32 * (i % (PD + 1)):32 * (i % (PD + 1)) + 32]

def bloads(i):
    L = []
    for mb in range(8):
        L += [I('s_add_u32', sTmp2, sKB, mb * 131072),
              I('buffer_load_dwordx4', bbuf(i)[4 * mb:4 * mb + 4], vVoffB, srdB, sTmp2, mods='offen')]
    return L + [I('s_add_u32', sKB, sKB, 512)]

def a_reads(i):
    slot = i % NS
    L = []
    for nb in range(5):
        f = vAF[i % 2][4 * nb:4 * nb + 4]
        off = slot * SLOT + nb * 32
        L += [I('ds_read_b64_tr_b16', f[0:2], vAA, mods=f'offset:{off}'),
              I('ds_read_b64_tr_b16', f[2:4], vAA, mods=f'offset:{off + 1280}')]
    return L

def step(i, n):
    L = []
    side = []
    if i + NS - 1 < n and 'nodma' not in EXP: side += dma_w(i + NS - 1)
    if i + PD < n and 'nob' not in EXP: side += bloads(i + PD)
    rd = ([WaitTag(f'wo{(i + 1) % NS}')] + a_reads(i + 1)) if i + 1 < n else []
    mf = []
    for nb in range(5):
        for mb in range(8):
            acc = aAcc[(mb * 5 + nb) * 4:(mb * 5 + nb) * 4 + 4]
            mf.append(mfma16(acc, vAF[i % 2][4 * nb:4 * nb + 4], bbuf(i)[4 * mb:4 * mb + 4], acc))
    k = 0
    for j, m_ in enumerate(mf):
        L.append(m_)
        if j < 20:
            upto = (j + 1) * len(side) // 20
            L += side[k:upto]; k = upto
        elif j == 20:
            L += rd[:1]
        elif j > 20 and 2 * (j - 21) + 1 < len(rd):
            L += rd[2 * (j - 21) + 1:2 * (j - 21) + 3]
    return L

def build():
    pre = setup()
    pre += [I('v_mov_b32', vT[0], 0)]
    pre += [I('v_accvgpr_write_b32', aAcc[i], vT[0]) for i in range(160)]
    for u in range(NS - 1): pre += dma_w(u)
    for u in range(PD): pre += bloads(u)
    pre += [WaitTag('wo0')] + a_reads(0)
    pre += [I('s_mov_b32', sCnt, 0)]
    U = 4
    N = 32
    body = []
    for i in range(U): body += step(i, 10 ** 6)
    NL = (N - 4) // U
    branch = [I('s_add_u32', sCnt, sCnt, 1), I('s_cmp_lt_u32', sCnt, NL), I('s_cbranch_scc1', 'L_oloop')]
    post = []
    for i in range(NL * U, N): post += step(i, N)
    post += [I('s_barrier')]
    for q in range(4):
        pass
    for w in range(4):
        post += [I('s_cmp_lg_u32', sW, w), I('s_cbranch_scc1', f'L_red{w}')]
        for d in range(1, 4):
            q = (w + d) % 4
            for x in range(10):
                src = aAcc[(q * 10 + x) * 4:(q * 10 + x) * 4 + 4]
                t = vE[4 * (x % 5):4 * (x % 5) + 4]
                post += [I('v_accvgpr_read_b32', t[r], src[r]) for r in range(4)]
                o_ = ((q * 3 + (3 - d)) * 10 + x) * 1024
                post += [I('ds_write_b128', vRed2 if o_ >= 61440 else vRed, t, mods=f'offset:{o_ % 61440}')]
        post += [I('v_accvgpr_read_b32', vE[r], aAcc[w * 40 + r]) for r in range(40)]
        post += [label(f'L_red{w}')]
    post += [waitcnt(lgkm=0), I('s_barrier')]
    post += [I('s_mul_i32', sTmp, sW, 30 * 1024), I('v_add_u32', vRed, sTmp, vRed)]
    for j in range(3):
        for x in range(10):
            t = vB[4 * x:4 * x + 4] if j % 2 == 0 else vB[64 + 4 * x:64 + 4 * x + 4]
            post += [I('ds_read_b128', t, vRed, mods=f'offset:{(j * 10 + x) * 1024}')]
        for x in range(10):
            t = vB[4 * x:4 * x + 4] if j % 2 == 0 else vB[64 + 4 * x:64 + 4 * x + 4]
            post += [I('v_add_f32', vE[4 * x + r], vE[4 * x + r], t[r]) for r in range(4)]
    for mbl in range(2):
        for nb in range(5):
            x = mbl * 5 + nb
            pk = vAF[0][2 * x:2 * x + 2]
            post += [I('v_cvt_pk_bf16_f32', pk[0], vE[4 * x], vE[4 * x + 1]), I('v_cvt_pk_bf16_f32', pk[1], vE[4 * x + 2], vE[4 * x + 3]),
                     I('s_mov_b32', sTmp, mbl * 16 * 2560),
                     I('buffer_store_dwordx2', pk, vOutOff, srdOut, sTmp, mods=f'offen offset:{nb * 32}')]
    post += [waitcnt(vm=0), label('L_oend'), I('s_endpgm')]
    return finalize(pre, body, post, 'L_oloop', branch)

def kernel_text(name='oproj_kernel'):
    body = build()
    hdr = f'.globl {name}\n.p2align 8\n.type {name},@function\n{name}:\n'
    desc = f'''.p2align 6
.amdhsa_kernel {name}
  .amdhsa_next_free_vgpr {NVGPR + 160}
  .amdhsa_next_free_sgpr 102
  .amdhsa_accum_offset {NVGPR}
  .amdhsa_group_segment_fixed_size 0
  .amdhsa_kernarg_size 104
  .amdhsa_user_sgpr_count 2
  .amdhsa_user_sgpr_kernarg_segment_ptr 1
  .amdhsa_system_sgpr_workgroup_id_x 1
.end_amdhsa_kernel
'''
    return hdr + emit(body), desc, len(body)

if __name__ == '__main__':
    code, desc, n = kernel_text()
    txt = f'; @launch kernel=oproj_kernel grid=(256,1,1) block=(256,1,1) lds={LDS_BYTES}\n.amdgcn_target "amdgcn-amd-amdhsa--gfx950"\n.text\n' + code + '.section .rodata,"a"\n' + desc
    open(sys.argv[1] if len(sys.argv) > 1 else 'oproj2.test.s', 'w').write(txt)
    print('instructions:', n)
```

```python
import math, sys, struct, os
from asmcore import *
EXP = os.environ.get('AEXP', '')
C_SCALE = math.log2(math.e) / math.sqrt(128.0)
THR = 8.0
def f32bits(x): return struct.unpack('<I', struct.pack('<f', x))[0]

vTID = v(0)
vS = [v(16, 64), v(80, 64)]
vSall = v(16, 128)
vP = v(144, 32)
vKF = [v(176 + 4 * i, 4) for i in range(4)]
vVF = [v(192 + 4 * i, 4) for i in range(4)]
vKA = [v(208 + i) for i in range(8)]
vVA = [v(216 + i) for i in range(4)]
vOffK = [v(220 + i) for i in range(4)]
vOffV = v(224)
vM = [v(225), v(226)]; vL = [v(227), v(228)]; vMC = [v(229), v(230)]
vRow = v(231)
vT = [v(232 + i) for i in range(16)]
NVGPR = 248
aQ = a(0, 64)
aO = a(64, 128)
NAGPR = 192

sKP, sVP, sWS = s(4, 2), s(6, 2), s(8, 2)
srdK, srdV, srdO = s(12, 4), s(16, 4), s(24, 4)
sCnt, sKoff, sSlot, sW4096, sC, sTmp, sTmp2 = s(28), s(29), s(30), s(31), s(32), s(33), s(34)
sM0V, sThr = s(35), s(39)
sXP, sWQP = s(40, 2), s(42, 2)
srdX, srdWQ = s(44, 4), s(48, 4)
VREG = 65536

def mfma32(d, a_, b_, c_): return I('v_mfma_f32_32x32x16_bf16', d, a_, b_, c_)

def setup():
    L = []; A = L.append
    A(I('s_cmp_ge_u32', s(2), 512)); A(I('s_cbranch_scc1', 'L_end'))
    A(I('s_lshr_b32', sTmp, s(2), 8))
    A(I('s_mul_i32', sTmp2, sTmp, 40))
    A(I('s_load_dwordx2', sXP, s(0, 2), sTmp2))
    A(I('s_add_u32', sTmp2, sTmp2, 8)); A(I('s_load_dwordx2', sKP, s(0, 2), sTmp2))
    A(I('s_add_u32', sTmp2, sTmp2, 8)); A(I('s_load_dwordx2', sVP, s(0, 2), sTmp2))
    A(I('s_add_u32', sTmp2, sTmp2, 8)); A(I('s_load_dwordx2', sWQP, s(0, 2), sTmp2))
    A(I('s_load_dwordx2', sWS, s(0, 2), 96))
    A(waitcnt(lgkm=0))
    A(I('s_and_b32', sTmp2, s(2), 255)); A(I('s_lshl_b32', s(36), sTmp2, 18))
    A(I('s_add_u32', srdK[0], sKP[0], s(36))); A(I('s_addc_u32', srdK[1], sKP[1], 0))
    A(I('s_mov_b32', srdK[2], 262144)); A(I('s_mov_b32', srdK[3], 0x00020000))
    A(I('s_add_u32', srdV[0], sVP[0], s(36))); A(I('s_addc_u32', srdV[1], sVP[1], 0))
    A(I('s_mov_b32', srdV[2], 262144)); A(I('s_mov_b32', srdV[3], 0x00020000))
    A(I('s_lshr_b32', s(36), s(2), 5)); A(I('s_and_b32', s(36), s(36), 7))
    A(I('s_mul_i32', s(37), s(36), 307200))
    A(I('s_add_u32', srdX[0], sXP[0], s(37))); A(I('s_addc_u32', srdX[1], sXP[1], 0))
    A(I('s_mov_b32', srdX[2], 307200)); A(I('s_mov_b32', srdX[3], 0x00020000))
    A(I('s_mul_i32', s(36), s(36), 240))
    A(I('s_mul_i32', s(37), sTmp, 1920)); A(I('s_add_u32', s(36), s(36), s(37)))
    A(I('s_lshl_b32', s(36), s(36), 13))
    A(I('s_and_b32', s(37), s(2), 31)); A(I('s_lshl_b32', s(38), s(37), 11))
    A(I('s_lshl_b32', s(37), s(37), 8))
    A(I('s_add_u32', s(36), s(36), s(38)))
    A(I('s_add_u32', srdO[0], sWS[0], s(36))); A(I('s_addc_u32', srdO[1], sWS[1], 0))
    A(I('s_mov_b32', srdO[2], 29 * 65536 + 2048)); A(I('s_mov_b32', srdO[3], 0x00020000))
    A(I('s_add_u32', srdWQ[0], sWQP[0], s(37))); A(I('s_addc_u32', srdWQ[1], sWQP[1], 0))
    A(I('s_mov_b32', srdWQ[2], 639 * 8192 + 256)); A(I('s_mov_b32', srdWQ[3], 0x00020000))
    A(I('s_mov_b32', sC, f32bits(C_SCALE))); A(I('s_mov_b32', sThr, f32bits(THR / C_SCALE)))
    l, w, t0, t1, t2, t3 = vT[0], vT[1], vT[2], vT[3], vT[4], vT[5]
    A(I('v_and_b32', l, 63, vTID)); A(I('v_lshrrev_b32', w, 6, vTID))
    A(I('v_readfirstlane_b32', sTmp, w)); A(I('s_lshl_b32', sW4096, sTmp, 12))
    A(I('v_and_b32', t0, 31, l)); A(I('v_lshlrev_b32', t0, 8, t0))
    A(I('v_lshrrev_b32', t1, 5, l)); A(I('v_and_b32', t2, 1, l)); A(I('v_xor_b32', t1, t1, t2))
    A(I('v_lshlrev_b32', t1, 4, t1)); A(I('v_add_u32', t0, t0, t1))
    A(I('v_and_b32', t1, 15, l)); A(I('v_lshrrev_b32', t1, 1, t1)); A(I('v_lshlrev_b32', t1, 5, t1))
    A(I('v_add_u32', t0, t0, t1))
    for kk in range(8):
        A(I('v_xor_b32', vKA[kk], kk << 5, t0))
    A(I('v_bfe_u32', t1, l, 2, 2))
    A(I('v_bfe_u32', t2, l, 4, 1)); A(I('v_lshlrev_b32', t2, 5, t2))
    A(I('v_and_b32', t3, 3, l)); A(I('v_lshlrev_b32', t3, 3, t3)); A(I('v_add_u32', t2, t2, t3))
    A(I('v_add_u32', t2, VREG, t2))
    A(I('v_lshrrev_b32', t0, 5, l)); A(I('v_lshlrev_b32', t0, 2, t0)); A(I('v_add_u32', t0, t0, t1))
    A(I('v_lshlrev_b32', t0, 8, t0)); A(I('v_add_u32', t0, t0, t2))
    A(I('v_lshrrev_b32', t3, 5, l)); A(I('v_lshlrev_b32', t3, 3, t3)); A(I('v_add_u32', t3, t3, t1))
    A(I('v_lshlrev_b32', t3, 8, t3)); A(I('v_add_u32', t3, t3, t2))
    for db in range(4):
        A(I('v_xor_b32', t2, db, t1)); A(I('v_lshlrev_b32', t2, 6, t2))
        A(I('v_add_u32', vVA[db], t0, t2)); A(I('v_add_u32', vKF[0][db], t3, t2))
    A(I('v_lshlrev_b32', t0, 4, w)); A(I('v_lshrrev_b32', t1, 4, l)); A(I('v_add_u32', t0, t0, t1))
    A(I('v_and_b32', t1, 15, l))
    A(I('v_lshlrev_b32', t3, 8, t0))
    for j in range(4):
        A(I('v_add_u32', t2, 4 * j, t0)); A(I('v_and_b32', t2, 15, t2)); A(I('v_xor_b32', t2, t2, t1))
        A(I('v_lshlrev_b32', t2, 4, t2)); A(I('v_add_u32', vOffK[j], t3, t2))
    A(I('v_and_b32', t2, 3, t0)); A(I('v_lshlrev_b32', t2, 2, t2)); A(I('v_xor_b32', t2, t2, t1))
    A(I('v_lshlrev_b32', t2, 4, t2)); A(I('v_add_u32', vOffV, t3, t2))
    A(I('v_lshlrev_b32', t3, 13, t0)); A(I('v_add_u32', vKF[1][0], t3, t2))
    A(I('v_lshlrev_b32', t0, 6, w)); A(I('v_and_b32', t1, 31, l)); A(I('v_add_u32', t0, t0, t1))
    A(I('v_mul_u32_u24', t1, 1280, t0)); A(I('v_lshrrev_b32', t2, 5, l)); A(I('v_lshlrev_b32', t2, 4, t2))
    A(I('v_add_u32', vKF[1][1], t1, t2))
    A(I('v_lshrrev_b32', t1, 3, t0)); A(I('v_lshlrev_b32', t1, 16, t1))
    A(I('v_lshlrev_b32', t2, 3, t2)); A(I('v_add_u32', t1, t1, t2))
    A(I('v_and_b32', t2, 7, t0)); A(I('v_lshlrev_b32', t2, 4, t2)); A(I('v_add_u32', vRow, t1, t2))
    return L

def dma_k(koff, m0k, tag='dma'):
    return [I('s_mov_b32', M0, m0k)] + [I('buffer_load_dwordx4', vOffK[j], srdK, koff, mods=f'offen offset:{1024 * j} lds', tag=tag) for j in range(4)]
def dma_v(voff, m0k, tag='dma'):
    return [I('s_add_u32', sM0V, m0k, VREG), I('s_mov_b32', M0, sM0V)] + \
           [I('buffer_load_dwordx4', vOffV, srdV, voff, mods=f'offen offset:{1024 * j} lds', tag=tag) for j in range(4)]

def qproj():
    L = []; A = L.append
    vWoff, vXoff = vKF[1][0], vKF[1][1]
    va = vKF[0]
    def dma_wq(kt):
        slot = (kt % 4) * 16384
        R_ = [I('s_add_u32', sTmp, sW4096, VREG + slot), I('s_mov_b32', M0, sTmp), I('s_mov_b32', sTmp2, kt * 64 * 8192)]
        for j in range(4):
            R_ += [I('buffer_load_dwordx4', vWoff, srdWQ, sTmp2, mods='offen lds', tag=f'wq{kt}')]
            if j < 3: R_ += [I('s_add_u32', sTmp, sTmp, 1024), I('s_mov_b32', M0, sTmp), I('s_add_u32', sTmp2, sTmp2, 4 * 8192)]
        return R_
    def xbuf(kt): return vSall[32 * (kt % 4):32 * (kt % 4) + 32]
    def xload(kt):
        R_ = []
        for qb in range(2):
            R_ += [I('s_mov_b32', s(60), qb * 32 * 1280)]
            R_ += [I('buffer_load_dwordx4', xbuf(kt)[16 * qb + 4 * kb:16 * qb + 4 * kb + 4], vXoff, srdX, s(60),
                     mods=f'offen offset:{(4 * kt + kb) * 32}') for kb in range(4)]
        return R_
    for kt in range(3): L += dma_wq(kt)
    for kt in range(3): L += xload(kt)
    for kt in range(10):
        A(WaitTag(f'wq{kt}')); A(I('s_barrier'))
        if kt + 3 < 10: L += dma_wq(kt + 3) + xload(kt + 3)
        slot = (kt % 4) * 16384
        seq = [(kb, db) for kb in range(4) for db in range(4)]
        def rd(i):
            kb, db = seq[i]; f = vVF[i % 4]
            return [I('ds_read_b64_tr_b16', f[0:2], va[db], mods=f'offset:{slot + kb * 4096}'),
                    I('ds_read_b64_tr_b16', f[2:4], va[db], mods=f'offset:{slot + kb * 4096 + 1024}')]
        for i, (kb, db) in enumerate(seq):
            if i == 0:
                for j in range(3): L += rd(j)
            if i + 3 < 16: L += rd(i + 3)
            for qb in range(2):
                acc = aO[64 * qb + 16 * db:64 * qb + 16 * db + 16]
                A(mfma32(acc, vVF[i % 4], xbuf(kt)[16 * qb + 4 * kb:16 * qb + 4 * kb + 4], acc if (kt or kb) else 0))
    for qb in range(2):
        for kk in range(8):
            db, a0 = kk // 2, 2 * (kk % 2)
            r0 = 64 * qb + 16 * db + 4 * a0
            t = vT[8 * (kk % 2):8 * (kk % 2) + 8]; q4 = vSall[4 * kk:4 * kk + 4]
            for j in range(8): A(I('v_accvgpr_read_b32', t[j], aO[r0 + j]))
            for j in range(4): A(I('v_cvt_pk_bf16_f32', q4[j], t[2 * j], t[2 * j + 1]))
            A(I('v_permlane32_swap_b32', q4[0], q4[2])); A(I('v_permlane32_swap_b32', q4[1], q4[3]))
            for j in range(4): A(I('v_accvgpr_write_b32', aQ[32 * qb + 4 * kk + j], q4[j]))
    return L

def qk_groups(Sd, slot_imm):
    G = []
    seq = [(kb, kk) for kb in range(2) for kk in range(8)]
    def rd(i):
        kb, kk = seq[i]
        return I('ds_read_b128', vKF[i % 4], vKA[kk], mods=f'offset:{slot_imm + kb * 8192}')
    D = 3
    for i, (kb, kk) in enumerate(seq):
        pre = []
        if i == 0: pre += [rd(j) for j in range(D)]
        if i + D < len(seq): pre.append(rd(i + D))
        for qb in range(2):
            acc = Sd[32 * qb + 16 * kb:32 * qb + 16 * kb + 16]
            G.append(pre + [mfma32(acc, vKF[i % 4], aQ[32 * qb + 4 * kk:32 * qb + 4 * kk + 4], acc if kk else 0)]); pre = []
    return G

def pv_groups(slot_imm):
    G = []
    seq = [(kb, db) for kb in range(4) for db in range(4)]
    def rd(i):
        kb, db = seq[i]; f = vVF[i % 4]
        return [I('ds_read_b64_tr_b16', f[0:2], vVA[db], mods=f'offset:{slot_imm + kb * 4096}'),
                I('ds_read_b64_tr_b16', f[2:4], vVA[db], mods=f'offset:{slot_imm + kb * 4096 + 2048}')]
    D = 3
    for i, (kb, db) in enumerate(seq):
        pre = []
        if i == 0:
            for j in range(D): pre += rd(j)
        if i + D < len(seq): pre += rd(i + D)
        for qb in range(2):
            acc = aO[64 * qb + 16 * db:64 * qb + 16 * db + 16]
            G.append(pre + [mfma32(acc, vVF[i % 4], vP[16 * qb + 4 * kb:16 * qb + 4 * kb + 4], acc)]); pre = []
    return G

def fma_neg(d, a_, b_, c_):
    i = I('v_fma_f32', d, a_, b_, c_); i.ops[3] = '-' + str(c_)
    return i

def max_block(Sc):
    L = []; A = L.append
    for qb in range(2):
        t = vT[8 * qb:8 * qb + 8]; S_ = Sc[32 * qb:32 * qb + 32]
        A(I('v_max3_f32', t[0], S_[0], S_[1], S_[2])); A(I('v_max3_f32', t[1], S_[3], S_[4], S_[5]))
        for j in range(6, 32, 4):
            A(I('v_max3_f32', t[0], t[0], S_[j], S_[j + 1]))
            if j + 3 < 32: A(I('v_max3_f32', t[1], t[1], S_[j + 2], S_[j + 3]))
        A(I('v_max_f32', t[0], t[0], t[1])); A(I('v_mov_b32', t[1], t[0]))
        A(I('v_permlane32_swap_b32', t[0], t[1]))
        A(I('v_max3_f32', t[0], t[0], t[1], vM[qb]))
        A(I('v_sub_f32', t[2], t[0], vM[qb]))
    A(I('v_max_f32', vT[2], vT[2], vT[10]))
    A(I('v_cmp_gt_f32', VCC, vT[2], sThr))
    return L

def rare_block():
    L = [nop(16), nop(16)]; A = L.append
    for qb in range(2):
        t = vT[8 * qb:8 * qb + 8]
        A(I('v_sub_f32', t[1], vM[qb], t[0])); A(I('v_mul_f32', t[1], sC, t[1])); A(I('v_exp_f32', t[1], t[1]))
        A(I('v_mov_b32', vM[qb], t[0])); A(I('v_mul_f32', vMC[qb], sC, t[0]))
        A(I('v_mul_f32', vL[qb], vL[qb], t[1]))
        for i in range(64):
            x = t[2 + i % 6]
            A(I('v_accvgpr_read_b32', x, aO[64 * qb + i])); A(I('v_mul_f32', x, x, t[1])); A(I('v_accvgpr_write_b32', aO[64 * qb + i], x))
    return L + [nop(16)]

def sm_unit(Sc, qb, kbp):
    L = []; A = L.append
    S_ = Sc[32 * qb + 8 * kbp:32 * qb + 8 * kbp + 8]
    for j in range(0, 8, 2):
        A(fma_neg(S_[j], S_[j], sC, vMC[qb])); A(fma_neg(S_[j + 1], S_[j + 1], sC, vMC[qb]))
        A(I('v_exp_f32', S_[j], S_[j])); A(I('v_exp_f32', S_[j + 1], S_[j + 1]))
        A(I('v_add_f32', vL[qb], vL[qb], S_[j])); A(I('v_add_f32', vL[qb], vL[qb], S_[j + 1]))
        A(I('v_cvt_pk_bf16_f32', vP[16 * qb + 4 * kbp + j // 2], S_[j], S_[j + 1]))
    return L

def weave(groups, fillers):
    out = []; n = len(groups); k = len(fillers); done = 0
    for i, g in enumerate(groups):
        out += g
        upto = (i + 1) * k // n
        out += fillers[done:upto]; done = upto
    return out

RARE = []
def check(idx):
    RARE.append(idx)
    return [I('s_cbranch_vccnz', f'L_rare{idx}'), label(f'L_back{idx}')]

def iteration(Sc, Sn, slot_imm, idx, do_qk=True):
    L = []
    fa = []
    for kbp in range(3):
        for qb in range(2): fa += sm_unit(Sc, qb, kbp)
    fb = sm_unit(Sc, 0, 3) + sm_unit(Sc, 1, 3)
    if 'noexp' in EXP: fa = []; fb = []
    if do_qk:
        L += weave(qk_groups(Sn, slot_imm), fa)
        pg = pv_groups(slot_imm)
        L += weave(pg[:20], fb) + weave(pg[20:], max_block(Sn)) + check(idx)
    else:
        L += fa + weave(pv_groups(slot_imm)[:20], fb) + weave(pv_groups(slot_imm)[20:], [])
    return L

def stage_sync(dma=True):
    L = [waitcnt(vm=16), I('s_barrier')]
    if 'nosync' in EXP: return []
    if dma:
        L += [I('s_add_u32', sSlot, sSlot, 16384), I('s_and_b32', sSlot, sSlot, 0xffff),
              I('s_add_u32', sTmp, sSlot, sW4096),
              I('s_add_u32', sKoff, sKoff, 16384), I('s_sub_u32', sTmp2, sKoff, 16384)]
        L += dma_k(sKoff, sTmp) + dma_v(sTmp2, sTmp)
    return L

def toggle(): return [I('v_xor_b32', r, 0x8000, r) for r in vKA + vVA]

def epilogue():
    L = []; A = L.append
    t = vT
    for qb in range(2):
        A(I('v_mov_b32', t[0], vL[qb])); A(I('v_mov_b32', t[1], vL[qb]))
        A(I('v_permlane32_swap_b32', t[0], t[1]))
        A(I('v_add_f32', t[0], t[0], t[1])); A(I('v_rcp_f32', t[0], t[0]))
        A(I('s_mov_b32', s(60), qb * 4 * 65536))
        n = 0
        for db in range(4):
            for half in range(2):
                base = vS[qb][n:n + 4]; n += 4
                x = vS[qb][32 + (n % 32):32 + (n % 32) + 8] if n % 32 + 8 <= 32 else vS[qb][32:40]
                for q in range(4):
                    r = 64 * qb + 16 * db + 8 * half + 2 * q
                    A(I('v_accvgpr_read_b32', x[2 * q], aO[r])); A(I('v_accvgpr_read_b32', x[2 * q + 1], aO[r + 1]))
                    A(I('v_mul_f32', x[2 * q], x[2 * q], t[0])); A(I('v_mul_f32', x[2 * q + 1], x[2 * q + 1], t[0]))
                    A(I('v_cvt_pk_bf16_f32', base[q], x[2 * q], x[2 * q + 1]))
                A(I('buffer_store_dwordx4', base, vRow, srdO, s(60), mods=f'offen offset:{512 * db + 256 * half}'))
    return L

def build():
    RARE.clear()
    pre = setup()
    for u in range(4):
        pre += [I('s_add_u32', sTmp, sW4096, ((u + 1) % 4) * 16384), I('s_mov_b32', sKoff, u * 16384)]
        pre += dma_k(sKoff, sTmp, tag=f'k{u}')
    if 'noqp' not in EXP: pre += qproj()
    pre += [I('s_barrier')]
    for u in range(1, 4):
        pre += [I('s_add_u32', sTmp, sW4096, ((u + 1) % 4) * 16384), I('s_mov_b32', sTmp2, (u - 1) * 16384)]
        pre += dma_v(sTmp2, sTmp)
    pre += [I('s_mov_b32', sSlot, 0), I('s_mov_b32', sKoff, 3 * 16384)]
    for qb in range(2): pre += [I('v_mov_b32', vM[qb], 0xff800000), I('v_mov_b32', vL[qb], 0)]
    pre += [I('v_mov_b32', vT[15], 0)] + [I('v_accvgpr_write_b32', aO[i], vT[15]) for i in range(128)]
    for g in qk_groups(vS[0], 1 * 16384): pre += g
    pre += max_block(vS[0]) + check(0)
    pre += [I('s_mov_b32', sCnt, 0)] + toggle()
    pre += [waitcnt(vm=4), I('s_barrier')]
    pre += [I('s_add_u32', sSlot, sSlot, 16384), I('s_and_b32', sSlot, sSlot, 0xffff),
            I('s_add_u32', sTmp, sSlot, sW4096),
            I('s_add_u32', sKoff, sKoff, 16384), I('s_sub_u32', sTmp2, sKoff, 16384)]
    pre += dma_k(sKoff, sTmp) + dma_v(sTmp2, sTmp)
    body = []
    body += iteration(vS[0], vS[1], 0, 1) + stage_sync()
    body += iteration(vS[1], vS[0], 16384, 2) + toggle() + stage_sync()
    branch = [I('s_add_u32', sCnt, sCnt, 1), I('s_cmp_lt_u32', sCnt, 7), I('s_cbranch_scc1', 'L_loop')]
    post = []
    post += iteration(vS[0], vS[1], 0, 3) + stage_sync(dma=False)
    post += iteration(vS[1], vS[0], 16384, 4, do_qk=False)
    post += epilogue()
    post += [waitcnt(vm=0), label('L_end'), I('s_endpgm')]
    out = finalize(pre, body, post, 'L_loop', branch)
    for idx in RARE:
        rb, _, _ = run_pass([label(f'L_rare{idx}')] + rare_block() + [I('s_branch', f'L_back{idx}')])
        out += rb
    return out

def kernel_text(name='attn_kernel'):
    body = build()
    hdr = f'.globl {name}\n.p2align 8\n.type {name},@function\n{name}:\n'
    desc = f'''.p2align 6
.amdhsa_kernel {name}
  .amdhsa_next_free_vgpr {NVGPR + NAGPR}
  .amdhsa_next_free_sgpr 102
  .amdhsa_accum_offset {NVGPR}
  .amdhsa_group_segment_fixed_size 0
  .amdhsa_kernarg_size 104
  .amdhsa_user_sgpr_count 2
  .amdhsa_user_sgpr_kernarg_segment_ptr 1
  .amdhsa_system_sgpr_workgroup_id_x 1
.end_amdhsa_kernel
'''
    return hdr + emit(body), desc, len(body)

if __name__ == '__main__':
    code, desc, n = kernel_text()
    txt = '; @launch kernel=attn_kernel grid=(512,1,1) block=(256,1,1) lds=131072\n.amdgcn_target "amdgcn-amd-amdhsa--gfx950"\n.text\n' + code + '.section .rodata,"a"\n' + desc
    open(sys.argv[1] if len(sys.argv) > 1 else 'attn3.test.s', 'w').write(txt)
    print('instructions:', n)
```

```python
import sys, importlib
import gen_attn3, gen_oproj2
NAME = 'concat_heads__mha_block_cached__mha_block_cached__near_ridge'
ref = open(f'cdna_kernels/{NAME}.s.ref').read()
hdr = []
for ln in ref.split('\n'):
    if ln.startswith('; @launch'): break
    hdr.append(ln)
c1, d1, n1 = gen_attn3.kernel_text('attn_kernel')
c2, d2, n2 = gen_oproj2.kernel_text('oproj_kernel')
txt = '\n'.join(hdr) + '\n'
txt += '; @launch kernel=attn_kernel grid=(512,1,1) block=(256,1,1) lds=131072\n'
txt += f'; @launch kernel=oproj_kernel grid=(256,1,1) block=(256,1,1) lds={gen_oproj2.LDS_BYTES}\n'
txt += '.amdgcn_target "amdgcn-amd-amdhsa--gfx950"\n.text\n' + c1 + c2 + '.section .rodata,"a"\n' + d1 + d2
out = sys.argv[1] if len(sys.argv) > 1 else f'cdna_kernels/{NAME}.s'
open(out, 'w').write(txt)
print(n1, n2, len(txt))
```
